```python
import torch

def _softmax(x, axis=-1):
    return torch.softmax(x, dim=axis)
def _gelu(x):
    return torch.nn.functional.gelu(x, approximate="tanh")
def _silu(x):
    return torch.nn.functional.silu(x)
def _sigmoid(x):
    return torch.sigmoid(x)
def _layernorm(x, axis=-1, eps=1e-5):
    m = x.mean(dim=axis, keepdim=True)
    v = x.var(dim=axis, keepdim=True, unbiased=False)
    return (x - m) / torch.sqrt(v + eps)
def _scatter_add(tgt, idx, src, axis=0):
    return tgt.clone().index_add_(axis, idx, src)
def _segment_sum(src, seg, n):
    out = torch.zeros((n,) + src.shape[1:], dtype=src.dtype)
    return out.index_add_(0, seg, src)
def _pad(x, pw):
    flat = tuple(v for pair in reversed(pw) for v in pair)
    return torch.nn.functional.pad(x, flat)

kernel_name = 'standalone__gqa_softmax__near_ridge'

def setup_inputs():

    _w = (lambda a: (lambda t: t.to(torch.bfloat16) if t.is_floating_point() else t)(torch.as_tensor(a)))
    B, Hq, Hkv, Sq, Sk, D = 8, 32, 8, 144, 1024, 128
    return {
        "q": _w((lambda *s: torch.randn(*s, dtype=torch.bfloat16) * 0.8)(B, Hq, Sq, D)),
        "k": _w((lambda *s: torch.randn(*s, dtype=torch.bfloat16) * 0.8)(B, Hkv, Sk, D)),
        "v": _w((lambda *s: torch.randn(*s, dtype=torch.bfloat16) * 0.05)(B, Hkv, Sk, D)),
    }

def reference(q, k, v):
    B, Hq, Sq, D = q.shape
    Hkv = k.shape[1]
    rep = Hq // Hkv
    k = (lambda x, n, axis: torch.repeat_interleave(x, n, dim=axis))(k, rep, axis=1)
    v = (lambda x, n, axis: torch.repeat_interleave(x, n, dim=axis))(v, rep, axis=1)
    scale = D ** -0.5
    scores = torch.einsum("bhqd,bhkd->bhqk", q, k) * scale
    p = _softmax(scores, axis=-1)
    return torch.einsum("bhqk,bhkd->bhqd", p, v)
```

```python
import sys, struct, math

NAME = "standalone__gqa_softmax__near_ridge"
OUT = f"cdna_kernels/{NAME}.s"

def f32bits(x):
    return struct.unpack("<I", struct.pack("<f", x))[0]

CSCALE = (128 ** -0.5) * math.log2(math.e)
LTHRESH = 2.0 ** 40

KRING = 0
VRING = 65536
LAREA = 131072
CNT = LAREA + 1024
LDS_BYTES = LAREA + 1024 + 64
CAREA = VRING

class A:
    def __init__(s):
        s.l = []
    def e(s, t):
        s.l.append("  " + t)
    def lab(s, t):
        s.l.append(t + ":")
    def c(s, t):
        s.l.append("  ; " + t)
    def text(s):
        return "\n".join(s.l) + "\n"

def vr(b, n):
    return f"v[{b}:{b+n-1}]"

vLANE = 1
vKA = [4, 5]; vVA = 6; vKC = [7, 8]; vVC = 9
vL = [10, 11]; vQO = 12
vT = [13, 14, 15, 2, 3]
vQ = 16; vNEGM = 48; vS = [64, 80]; vP = [96, 104]; vK = 112; vV = 144; vO = 176
vX = 240

sWAVE = 3
sQSRD = 8; sKSRD = 12; sVSRD = 16; sOSRD = 20; sDSRD = 24
sG = 32; sMEM = 33; sHEAD = 34; sQOFF = 35; sKVOFF = 36; sC = 37; sLOOP = 38; sKB = 39; sVB = 40
sN = 41; sH = 42; sLDSB = 43; sOFF = 44; sNEXT = 45; sT0 = 46; sT1 = 47; sT2 = 48; sTHR = 49
sK = 50

class LG:
    def __init__(s):
        s.n = 0
        s.done = 0
        s.tag = {}
    def issue(s, tag):
        s.tag[tag] = s.n
        s.n += 1
    def need(s, a, tags):
        m = max(s.tag[t] for t in tags)
        if m < s.done:
            return
        cnt = s.n - 1 - m
        assert cnt <= 15, cnt
        a.e(f"s_waitcnt lgkmcnt({cnt})")
        s.done = m + 1

def mfma32(a, d, A_, B_, c):
    cs = c if isinstance(c, str) else vr(c, 16)
    a.e(f"v_mfma_f32_32x32x16_bf16 {vr(d,16)}, {vr(A_,4)}, {vr(B_,4)}, {cs}")

def mfma16(a, d, A_, B_, c):
    cs = c if isinstance(c, str) else vr(c, 4)
    a.e(f"v_mfma_f32_16x16x32_bf16 {vr(d,4)}, {vr(A_,4)}, {vr(B_,4)}, {cs}")

def kread(a, lg, s, slotoff, addr=None):
    ad = (addr or vKA)[s & 1]
    a.e(f"ds_read_b128 {vr(vK+4*s,4)}, v{ad} offset:{slotoff + (s>>1)*2048}")
    lg.issue(("K", s))

def vread(a, lg, n, slotoff):
    f = n >> 1; jj = n & 1
    ks = f >> 2; t = f & 3
    a.e(f"ds_read_b64_tr_b16 {vr(vV+4*f+2*jj,2)}, v{vVA} offset:{slotoff + t*2048 + ks*1024 + jj*512}")
    lg.issue(("V", n))

def E(a, buf, e): a.e(f"v_exp_f32 v{vS[buf]+e}, v{vS[buf]+e}")
def Ad(a, buf, e): a.e(f"v_add_f32 v{vL[e&1]}, v{vL[e&1]}, v{vS[buf]+e}")
def Cv(a, buf, k): a.e(f"v_cvt_pk_bf16_f32 v{vP[buf]+k}, v{vS[buf]+2*k}, v{vS[buf]+2*k+1}")

def slot(a, lg, par, qk=True, kr=True, bar=True, smn=True, extra=None):
    cur = par; nxt = 1 - par
    voff = par * 8192
    koff = par * 8192
    extra = extra or {}
    vn = 0; kn = 0
    for g in range(16):
        if g < 8:
            if qk and g % 2 == 0:
                lg.need(a, [("K", g), ("K", g + 1)])
        else:
            if g % 2 == 0:
                f = g - 8
                lg.need(a, [("V", 2 * f + 1), ("V", 2 * f + 3)])
        if g < 8:
            if qk:
                mfma32(a, vS[nxt], vK + 4 * g, vQ + 4 * g, vNEGM if g == 0 else vS[nxt])
        else:
            ks = (g - 8) >> 2; t = g & 3
            mfma32(a, vO + 16 * t, vV + 4 * (ks * 4 + t), vP[cur] + 4 * ks, vO + 16 * t)
        nreads = 2 if g % 2 else 1
        reads = []
        for _ in range(nreads):
            if g <= 10:
                reads.append(("V", vn)); vn += 1
            elif kr:
                reads.append(("K", kn)); kn += 1
        def rd():
            if reads:
                k, i = reads.pop(0)
                if k == "V": vread(a, lg, i, voff)
                else: kread(a, lg, i, koff)
        if g <= 9:
            e = g + 6
            E(a, cur, e); rd(); Ad(a, cur, e - 1)
            if e % 2 == 0: Cv(a, cur, (e - 2) // 2)
            rd()
        else:
            e = g - 10
            if smn: E(a, nxt, e)
            rd()
            if e == 0:
                Ad(a, cur, 15); Cv(a, cur, 7)
            elif smn:
                Ad(a, nxt, e - 1)
                if e % 2 == 0: Cv(a, nxt, (e - 2) // 2)
            rd()
        if g == 10 and bar:
            a.e("s_barrier")
        for x in extra.get(g, []):
            a.e(x)

def scale_q(a, base, n, t0, t1):
    for i in range(n):
        r = base + i
        a.e(f"v_lshlrev_b32 v{t0}, 16, v{r}")
        a.e(f"v_and_b32 v{t1}, 0xffff0000, v{r}")
        a.e(f"v_mul_f32 v{t0}, s{sC}, v{t0}")
        a.e(f"v_mul_f32 v{t1}, s{sC}, v{t1}")
        a.e(f"v_cvt_pk_bf16_f32 v{r}, v{t0}, v{t1}")

def gen():
    a = A()
    hdr = open(f"cdna_kernels/{NAME}.s.ref").read().split("; @launch")[0]
    a.l.append(hdr.rstrip("\n"))
    a.l.append(f"; @launch grid=(256,1,1) block=(512,1,1) lds={LDS_BYTES}")
    a.l.append('.amdgcn_target "amdgcn-amd-amdhsa--gfx950"')
    a.l.append(".text")
    a.l.append(f".globl {NAME}_kernel")
    a.l.append(".p2align 8")
    a.l.append(f".type {NAME}_kernel,@function")
    a.lab(f"{NAME}_kernel")
    a.e("s_cmp_ge_u32 s2, 256")
    a.e("s_cbranch_scc1 L_end")
    a.e("s_load_dwordx4 s[4:7], s[0:1], 0")
    a.e("s_load_dwordx4 s[28:31], s[0:1], 16")
    a.e("v_lshrrev_b32 v1, 6, v0")
    a.e(f"s_and_b32 s{sG}, s2, 7")
    a.e(f"v_readfirstlane_b32 s{sWAVE}, v1")
    a.e(f"v_and_b32 v{vLANE}, 63, v0")
    a.e(f"s_lshr_b32 s{sMEM}, s2, 5")
    a.e(f"s_lshl_b32 s{sMEM}, s{sMEM}, 3")
    a.e(f"s_add_u32 s{sG}, s{sG}, s{sMEM}")
    a.e(f"s_lshr_b32 s{sMEM}, s2, 3")
    a.e(f"s_and_b32 s{sMEM}, s{sMEM}, 3")
    a.e(f"s_lshl_b32 s{sHEAD}, s{sG}, 2")
    a.e(f"s_add_u32 s{sHEAD}, s{sHEAD}, s{sMEM}")
    a.e(f"s_mul_i32 s{sQOFF}, s{sHEAD}, 36864")
    a.e(f"s_lshl_b32 s{sKVOFF}, s{sG}, 18")
    a.e(f"s_mov_b32 s{sC}, {f32bits(CSCALE):#x}")
    a.e(f"s_mov_b32 s{sTHR}, {f32bits(LTHRESH):#x}")
    a.e("s_waitcnt lgkmcnt(0)")
    for srd, p, nb in ((sQSRD, 4, 9437184), (sKSRD, 6, 16777216), (sVSRD, 28, 16777216), (sOSRD, 30, 9437184)):
        a.e(f"s_mov_b32 s{srd}, s{p}")
        a.e(f"s_and_b32 s{srd+1}, s{p+1}, 0xffff")
        a.e(f"s_mov_b32 s{srd+2}, {nb}")
        a.e(f"s_mov_b32 s{srd+3}, 0x20000")
    a.e(f"s_cmp_ge_u32 s{sWAVE}, 4")
    a.e("s_cbranch_scc1 L_helper")

    a.c("---- main wave ----")
    a.e(f"v_and_b32 v2, 31, v{vLANE}")
    a.e(f"v_lshrrev_b32 v3, 5, v{vLANE}")
    a.e(f"s_lshl_b32 s{sT0}, s{sWAVE}, 13")
    a.e(f"v_lshlrev_b32 v{vQO}, 8, v2")
    a.e(f"v_lshl_add_u32 v{vQO}, v3, 4, v{vQO}")
    a.e(f"v_add_u32 v{vQO}, s{sT0}, v{vQO}")
    for s in range(8):
        a.e(f"buffer_load_dwordx4 {vr(vQ+4*s,4)}, v{vQO}, s[{sQSRD}:{sQSRD+3}], s{sQOFF} offen offset:{32*s}")
    a.e("v_bfe_u32 v13, v2, 2, 2")
    a.e("v_xor_b32 v14, v13, v3")
    a.e("v_lshlrev_b32 v14, 4, v14")
    a.e(f"v_lshl_add_u32 v{vKC[0]}, v2, 6, v14")
    a.e(f"v_xor_b32 v{vKC[1]}, 32, v{vKC[0]}")
    a.e(f"v_bfe_u32 v13, v{vLANE}, 2, 2")
    a.e("v_lshl_add_u32 v13, v3, 2, v13")
    a.e("v_lshlrev_b32 v13, 6, v13")
    a.e(f"v_bfe_u32 v14, v{vLANE}, 4, 1")
    a.e("v_lshl_add_u32 v13, v14, 5, v13")
    a.e(f"v_and_b32 v14, 3, v{vLANE}")
    a.e(f"v_lshl_add_u32 v{vVC}, v14, 3, v13")
    a.e(f"v_add_u32 v{vVC}, {VRING:#x}, v{vVC}")
    a.e(f"v_mov_b32 v{vVA}, v{vVC}")
    a.e(f"v_mov_b32 v{vL[0]}, 0")
    a.e(f"v_mov_b32 v{vL[1]}, 0")
    for i in range(64):
        a.e(f"v_mov_b32 v{vO+i}, 0")
    a.e(f"s_mov_b32 s{sKB}, 0")
    a.e(f"s_mov_b32 s{sVB}, 0")
    a.e(f"s_mov_b32 s{sLOOP}, {(-15) & 0xffffffff:#x}")
    for half in range(2):
        a.e(f"s_waitcnt vmcnt({4 - 4*half})")
        scale_q(a, vQ + 16 * half, 16, 13, 14)
    lg = LG()
    a.e("s_barrier")
    for s in range(8):
        kread(a, lg, s, 0, addr=vKC)
    for s in range(8):
        lg.need(a, [("K", s)])
        mfma32(a, vS[0], vK + 4 * s, vQ + 4 * s, "0" if s == 0 else vS[0])
    a.e("s_barrier")
    for s in range(8):
        kread(a, lg, s, 8192, addr=vKC)
    a.e("s_nop 7")
    S = vS[0]
    a.e(f"v_max3_f32 v13, v{S}, v{S+1}, v{S+2}")
    a.e(f"v_max3_f32 v14, v{S+3}, v{S+4}, v{S+5}")
    a.e(f"v_max3_f32 v13, v13, v{S+6}, v{S+7}")
    a.e(f"v_max3_f32 v14, v14, v{S+8}, v{S+9}")
    a.e(f"v_max3_f32 v13, v13, v{S+10}, v{S+11}")
    a.e(f"v_max3_f32 v14, v14, v{S+12}, v{S+13}")
    a.e(f"v_max3_f32 v13, v13, v{S+14}, v{S+15}")
    a.e("v_max_f32 v13, v13, v14")
    a.e("v_mov_b32 v14, v13")
    a.e("s_nop 1")
    a.e("v_permlane32_swap_b32 v13, v14")
    a.e("v_max_f32 v13, v13, v14")
    for i in range(16):
        a.e(f"v_sub_f32 v{vNEGM+i}, 0, v13")
    for i in range(16):
        a.e(f"v_sub_f32 v{S+i}, v{S+i}, v13")
    for e in range(6):
        E(a, 0, e)
        if e >= 1: Ad(a, 0, e - 1)
        else: a.e("s_nop 0")
        if e >= 2 and e % 2 == 0: Cv(a, 0, (e - 2) // 2)
    a.l.append(".p2align 6")
    a.lab("L_main_loop")
    ex0 = {0: [f"s_add_u32 s{sKB}, s{sKB}, 0x4000"], 2: [f"s_and_b32 s{sKB}, s{sKB}, 0xffff"],
           4: [f"v_add_u32 v{vKA[0]}, s{sKB}, v{vKC[0]}"], 6: [f"v_add_u32 v{vKA[1]}, s{sKB}, v{vKC[1]}"]}
    ex1 = {2: [f"s_add_u32 s{sVB}, s{sVB}, 0x4000"], 4: [f"s_and_b32 s{sVB}, s{sVB}, 0xffff"],
           12: [f"v_add_u32 v{vVA}, s{sVB}, v{vVC}"], 14: [f"s_add_u32 s{sLOOP}, s{sLOOP}, 1"]}
    st0 = (lg.n - lg.done)
    slot(a, lg, 0, extra=ex0)
    slot(a, lg, 1, extra=ex1)
    assert (lg.n - lg.done) == st0, (lg.n - lg.done, st0)
    a.e("s_cbranch_scc0 L_main_loop")
    slot(a, lg, 0, kr=False)
    slot(a, lg, 1, qk=False, kr=False, bar=False, smn=False)
    a.e(f"v_add_f32 v13, v{vL[0]}, v{vL[1]}")
    a.e("v_mov_b32 v14, v13")
    a.e("s_nop 1")
    a.e("v_permlane32_swap_b32 v13, v14")
    a.e("v_add_f32 v13, v13, v14")
    a.e("v_rcp_f32 v15, v13")
    a.e("s_nop 7")
    for t in range(4):
        for k in range(2):
            o = vO + 16 * t + 8 * k
            x = vX + 4 * ((2 * t + k) % 4)
            for i in range(8):
                a.e(f"v_mul_f32 v{o+i}, v{o+i}, v15")
            for i in range(4):
                a.e(f"v_cvt_pk_bf16_f32 v{x+i}, v{o+2*i}, v{o+2*i+1}")
            a.e("s_nop 1")
            a.e(f"v_permlane32_swap_b32 v{x}, v{x+2}")
            a.e(f"v_permlane32_swap_b32 v{x+1}, v{x+3}")
            a.e(f"buffer_store_dwordx4 {vr(x,4)}, v{vQO}, s[{sOSRD}:{sOSRD+3}], s{sQOFF} offen offset:{64*t+32*k}")
    a.e("s_endpgm")

    hDMA = 4; hKC = 5; hVC = 6; hKA = 7; hVA = 8; hQO = 9; hL = 10
    hQ = 16; hNEGM = 32; hS = [36, 40]; hP = 44; hK = 48; hV = 80; hO = 112; hX = 144
    a.lab("L_helper")
    a.e("s_setprio 2")
    a.e(f"s_sub_u32 s{sH}, s{sWAVE}, 4")
    a.e(f"s_lshr_b32 s{sT0}, s{sH}, 1")
    a.e(f"s_and_b32 s{sT1}, s{sH}, 1")
    a.e(f"s_sub_u32 s{sOFF}, 1, s{sT0}")
    a.e(f"s_cmp_eq_u32 s{sT0}, 1")
    a.e(f"s_cselect_b32 s{sDSRD}, s{sVSRD}, s{sKSRD}")
    a.e(f"s_cselect_b32 s{sDSRD+1}, s{sVSRD+1}, s{sKSRD+1}")
    a.e(f"s_mov_b32 s{sDSRD+2}, 16777216")
    a.e(f"s_mov_b32 s{sDSRD+3}, 0x20000")
    a.e(f"s_cselect_b32 s{sT2}, 0, 3")
    a.e(f"s_lshl_b32 s{sLDSB}, s{sT0}, 16")
    a.e(f"s_lshl_b32 s{sT0}, s{sT1}, 10")
    a.e(f"s_add_u32 s{sLDSB}, s{sLDSB}, s{sT0}")
    a.e(f"v_and_b32 v2, 15, v{vLANE}")
    a.e(f"v_lshrrev_b32 v3, 4, v{vLANE}")
    a.e(f"v_lshlrev_b32 v{hQO}, 8, v2")
    a.e(f"v_lshl_add_u32 v{hQO}, v3, 4, v{hQO}")
    a.e(f"v_add_u32 v{hQO}, 0x8000, v{hQO}")
    for s in range(4):
        a.e(f"buffer_load_dwordx4 {vr(hQ+4*s,4)}, v{hQO}, s[{sQSRD}:{sQSRD+3}], s{sQOFF} offen offset:{64*s}")
    a.e(f"v_and_b32 v13, s{sT2}, v3")
    a.e(f"v_and_b32 v14, 3, v{vLANE}")
    a.e("v_xor_b32 v13, v13, v14")
    a.e("v_lshlrev_b32 v13, 4, v13")
    a.e(f"v_lshrrev_b32 v14, 2, v{vLANE}")
    a.e(f"v_lshl_add_u32 v{hDMA}, v14, 8, v13")
    a.e(f"s_lshl_b32 s{sT1}, s{sT1}, 12")
    a.e(f"v_add_u32 v{hDMA}, s{sT1}, v{hDMA}")
    a.e(f"s_mov_b32 s{sNEXT}, 0")

    def issue():
        a.e(f"s_and_b32 s{sT0}, s{sNEXT}, 7")
        a.e(f"s_lshl_b32 s{sT0}, s{sT0}, 13")
        a.e(f"s_add_u32 s{sT0}, s{sT0}, s{sLDSB}")
        a.e(f"s_lshl_b32 s{sT1}, s{sNEXT}, 13")
        a.e(f"s_add_u32 s{sT1}, s{sT1}, s{sKVOFF}")
        for t in range(4):
            a.e(f"s_add_u32 m0, s{sT0}, {t*2048 - t*64}")
            a.e("s_nop 0")
            a.e(f"buffer_load_dwordx4 v{hDMA}, s[{sDSRD}:{sDSRD+3}], s{sT1} offen offset:{t*64} lds")
        a.e(f"s_add_u32 s{sNEXT}, s{sNEXT}, 1")

    a.e(f"s_add_u32 s{sT2}, s{sOFF}, 5")
    a.lab("L_h_init")
    issue()
    a.e(f"s_cmp_lt_u32 s{sNEXT}, s{sT2}")
    a.e("s_cbranch_scc1 L_h_init")
    a.e(f"v_bfe_u32 v13, v{vLANE}, 2, 2")
    a.e("v_xor_b32 v14, v13, v3")
    a.e("v_lshlrev_b32 v14, 4, v14")
    a.e(f"v_lshl_add_u32 v{hKC}, v2, 6, v14")
    a.e("v_lshl_add_u32 v13, v3, 2, v13")
    a.e("v_lshlrev_b32 v13, 6, v13")
    a.e(f"v_and_b32 v14, 3, v{vLANE}")
    a.e(f"v_lshl_add_u32 v{hVC}, v14, 3, v13")
    a.e(f"v_add_u32 v{hVC}, {VRING:#x}, v{hVC}")
    a.e(f"v_mov_b32 v{hL}, 0")
    for i in range(32):
        a.e(f"v_mov_b32 v{hO+i}, 0")
    a.e(f"v_mov_b32 v13, {CNT:#x}")
    a.e("v_mov_b32 v14, 0")
    a.e("ds_write_b32 v13, v14")
    a.e("s_waitcnt vmcnt(20)")
    scale_q(a, hQ, 16, 13, 14)
    a.e(f"s_mov_b32 s{sN}, -1")

    def sync(tag):
        a.e(f"s_add_i32 s{sT0}, s{sN}, s{sOFF}")
        a.e(f"s_cmp_le_i32 s{sT0}, 26")
        a.e(f"s_cbranch_scc1 L_w20_{tag}")
        a.e(f"s_cmp_eq_i32 s{sT0}, 27")
        a.e(f"s_cbranch_scc1 L_w16_{tag}")
        a.e(f"s_cmp_eq_i32 s{sT0}, 28")
        a.e(f"s_cbranch_scc1 L_w12_{tag}")
        a.e(f"s_cmp_eq_i32 s{sT0}, 29")
        a.e(f"s_cbranch_scc1 L_w8_{tag}")
        a.e(f"s_cmp_eq_i32 s{sT0}, 30")
        a.e(f"s_cbranch_scc1 L_w4_{tag}")
        a.e("s_waitcnt vmcnt(0)")
        a.lab(f"L_w4_{tag}")
        a.e("s_waitcnt vmcnt(4)")
        a.lab(f"L_w8_{tag}")
        a.e("s_waitcnt vmcnt(8)")
        a.lab(f"L_w12_{tag}")
        a.e("s_waitcnt vmcnt(12)")
        a.lab(f"L_w16_{tag}")
        a.e("s_waitcnt vmcnt(16)")
        a.lab(f"L_w20_{tag}")
        a.e("s_waitcnt vmcnt(20) lgkmcnt(0)")
        a.e("s_barrier")
        a.e(f"s_cmp_gt_u32 s{sNEXT}, 31")
        a.e(f"s_cbranch_scc1 L_noissue_{tag}")
        issue()
        a.lab(f"L_noissue_{tag}")

    def h_kreads(addr):
        for u in range(2):
            for s in range(4):
                a.e(f"ds_read_b128 {vr(hK+(u*4+s)*4,4)}, v{addr} offset:{s*2048+u*1024}")

    a.lab("L_h_loop")
    a.e(f"s_cmp_gt_i32 s{sN}, 31")
    a.e("s_cbranch_scc1 L_h_nosync")
    sync("a")
    a.lab("L_h_nosync")
    a.e(f"s_cmp_gt_i32 s{sN}, 0")
    a.e("s_cbranch_scc1 L_h_dispatch")
    a.e(f"s_cmp_eq_i32 s{sN}, 0")
    a.e("s_cbranch_scc1 L_h_m9")
    h_kreads(hKC)
    a.e(f"s_add_i32 s{sN}, s{sN}, 1")
    a.e("s_branch L_h_loop")
    a.lab("L_h_m9")
    for u in range(2):
        for s in range(4):
            mfma16(a, hS[u], hK + (u * 4 + s) * 4, hQ + 4 * s, "0" if s == 0 else hS[u])
    a.e("s_nop 7")
    a.e("s_nop 1")
    a.e(f"v_max3_f32 v13, v{hS[0]}, v{hS[0]+1}, v{hS[0]+2}")
    a.e(f"v_max3_f32 v13, v13, v{hS[0]+3}, v{hS[1]}")
    a.e(f"v_max3_f32 v13, v13, v{hS[1]+1}, v{hS[1]+2}")
    a.e(f"v_max_f32 v13, v13, v{hS[1]+3}")
    a.e("v_mov_b32 v14, v13")
    a.e("s_nop 1")
    a.e("v_permlane32_swap_b32 v13, v14")
    a.e("v_max_f32 v13, v13, v14")
    a.e("v_mov_b32 v14, v13")
    a.e("s_nop 1")
    a.e("v_permlane16_swap_b32 v13, v14")
    a.e("v_max_f32 v13, v13, v14")
    for i in range(4):
        a.e(f"v_sub_f32 v{hNEGM+i}, 0, v13")
    a.lab("L_h_dispatch")
    a.e(f"s_sub_i32 s{sK}, s{sN}, s{sH}")
    a.e(f"s_add_i32 s{sN}, s{sN}, 1")
    a.e(f"s_cmp_lt_i32 s{sK}, 0")
    a.e("s_cbranch_scc1 L_h_loop")
    a.e(f"s_cmp_ge_i32 s{sK}, 32")
    a.e("s_cbranch_scc1 L_h_fin")
    a.e(f"s_and_b32 s{sT0}, s{sK}, 3")
    a.e(f"s_cmp_eq_u32 s{sT0}, 1")
    a.e("s_cbranch_scc1 L_h_B")
    a.e(f"s_cmp_eq_u32 s{sT0}, 2")
    a.e("s_cbranch_scc1 L_h_C")
    a.e(f"s_cmp_eq_u32 s{sT0}, 3")
    a.e("s_cbranch_scc1 L_h_D")
    a.e(f"s_add_i32 s{sT0}, s{sK}, s{sH}")
    a.e(f"s_and_b32 s{sT0}, s{sT0}, 7")
    a.e(f"s_lshl_b32 s{sT0}, s{sT0}, 13")
    a.e(f"v_add_u32 v{hKA}, s{sT0}, v{hKC}")
    a.e(f"v_add_u32 v{hVA}, s{sT0}, v{hVC}")
    h_kreads(hKA)
    a.e("s_waitcnt lgkmcnt(4)")
    for s in range(4):
        mfma16(a, hS[0], hK + s * 4, hQ + 4 * s, hNEGM if s == 0 else hS[0])
    for t16 in range(8):
        for u in range(2):
            a.e(f"ds_read_b64_tr_b16 {vr(hV+4*t16+2*u,2)}, v{hVA} offset:{(t16>>1)*2048+(t16&1)*32+u*1024}")
        if t16 == 3:
            a.e("s_waitcnt lgkmcnt(4)")
    a.e("s_waitcnt lgkmcnt(0)")
    a.e("s_branch L_h_loop")
    def h_sm(u):
        S_ = hS[u]
        for i in range(4):
            a.e(f"v_exp_f32 v{S_+i}, v{S_+i}")
        a.e("s_nop 0")
        for i in range(4):
            a.e(f"v_add_f32 v{hL}, v{hL}, v{S_+i}")
        a.e(f"v_cvt_pk_bf16_f32 v{hP+2*u}, v{S_}, v{S_+1}")
        a.e(f"v_cvt_pk_bf16_f32 v{hP+2*u+1}, v{S_+2}, v{S_+3}")
    a.lab("L_h_B")
    for s in range(4):
        mfma16(a, hS[1], hK + (4 + s) * 4, hQ + 4 * s, hNEGM if s == 0 else hS[1])
    a.e("s_nop 7")
    h_sm(0)
    a.e("s_branch L_h_loop")
    a.lab("L_h_C")
    a.e("s_nop 7")
    h_sm(1)
    a.e("s_nop 1")
    for t16 in range(4):
        mfma16(a, hO + 4 * t16, hV + 4 * t16, hP, hO + 4 * t16)
    a.e("s_branch L_h_loop")
    a.lab("L_h_D")
    for t16 in range(4, 8):
        mfma16(a, hO + 4 * t16, hV + 4 * t16, hP, hO + 4 * t16)
    a.e("s_branch L_h_loop")
    a.lab("L_h_fin")
    a.e(f"v_mov_b32 v14, v{hL}")
    a.e("s_nop 1")
    a.e(f"v_permlane32_swap_b32 v{hL}, v14")
    a.e(f"v_add_f32 v{hL}, v{hL}, v14")
    a.e(f"v_mov_b32 v14, v{hL}")
    a.e("s_nop 1")
    a.e(f"v_permlane16_swap_b32 v{hL}, v14")
    a.e(f"v_add_f32 v{hL}, v{hL}, v14")
    a.e(f"s_lshl_b32 s{sT0}, s{sH}, 13")
    a.e(f"s_add_u32 s{sT0}, s{sT0}, {CAREA:#x}")
    a.e(f"v_lshlrev_b32 v13, 4, v{vLANE}")
    a.e(f"v_add_u32 v14, s{sT0}, v13")
    a.e("s_nop 4")
    for t16 in range(8):
        a.e(f"ds_write_b128 v14, {vr(hO+4*t16,4)} offset:{t16*1024}")
    a.e(f"s_lshl_b32 s{sT0}, s{sH}, 8")
    a.e(f"s_add_u32 s{sT0}, s{sT0}, {LAREA:#x}")
    a.e(f"v_lshlrev_b32 v15, 2, v{vLANE}")
    a.e(f"v_add_u32 v14, s{sT0}, v15")
    a.e(f"ds_write_b32 v14, v{hL}")
    a.e("s_waitcnt lgkmcnt(0)")
    a.e(f"v_mov_b32 v14, {CNT:#x}")
    a.e("v_mov_b32 v12, 1")
    a.e("s_mov_b64 exec, 1")
    a.e("ds_add_u32 v14, v12")
    a.e("s_mov_b64 exec, -1")
    a.lab("L_h_spin")
    a.e("ds_read_b32 v12, v14")
    a.e("s_waitcnt lgkmcnt(0)")
    a.e(f"v_readfirstlane_b32 s{sT0}, v12")
    a.e("s_nop 3")
    a.e(f"s_cmp_lt_u32 s{sT0}, 4")
    a.e("s_cbranch_scc1 L_h_spin")
    a.e(f"s_lshl_b32 s{sT0}, s{sH}, 11")
    a.e(f"s_add_u32 s{sT0}, s{sT0}, {CAREA:#x}")
    a.e(f"v_add_u32 v14, s{sT0}, v13")
    for x in range(4):
        for k in range(2):
            a.e(f"ds_read_b128 {vr(hX+(x*2+k)*4,4)}, v14 offset:{x*8192+k*1024}")
    a.e(f"v_add_u32 v14, {LAREA:#x}, v15")
    for x in range(4):
        a.e(f"ds_read_b32 v{hK+x}, v14 offset:{x*256}")
    a.e("s_waitcnt lgkmcnt(0)")
    a.e(f"v_add_f32 v13, v{hK}, v{hK+1}")
    a.e(f"v_add_f32 v14, v{hK+2}, v{hK+3}")
    a.e("v_add_f32 v13, v13, v14")
    a.e("v_rcp_f32 v15, v13")
    for k in range(2):
        for i in range(4):
            r0 = hX + k * 4 + i
            a.e(f"v_add_f32 v{r0}, v{r0}, v{r0+8}")
            a.e(f"v_add_f32 v{r0+16}, v{r0+16}, v{r0+24}")
            a.e(f"v_add_f32 v{r0}, v{r0}, v{r0+16}")
            a.e(f"v_mul_f32 v{r0}, v{r0}, v15")
    for k in range(2):
        r0 = hX + k * 4
        a.e(f"v_cvt_pk_bf16_f32 v{hK+8+2*k}, v{r0}, v{r0+1}")
        a.e(f"v_cvt_pk_bf16_f32 v{hK+8+2*k+1}, v{r0+2}, v{r0+3}")
    a.e(f"v_lshlrev_b32 v14, 8, v2")
    a.e(f"v_lshl_add_u32 v14, v3, 3, v14")
    a.e(f"s_lshl_b32 s{sT0}, s{sH}, 6")
    a.e(f"s_add_u32 s{sT0}, s{sT0}, 0x8000")
    a.e(f"v_add_u32 v14, s{sT0}, v14")
    for k in range(2):
        a.e(f"buffer_store_dwordx2 {vr(hK+8+2*k,2)}, v14, s[{sOSRD}:{sOSRD+3}], s{sQOFF} offen offset:{32*k}")
    a.lab("L_end")
    a.e("s_endpgm")
    a.l.append('.section .rodata,"a"')
    a.l.append(".p2align 6")
    a.l.append(f".amdhsa_kernel {NAME}_kernel")
    a.l.append("  .amdhsa_next_free_vgpr 256")
    a.l.append("  .amdhsa_next_free_sgpr 64")
    a.l.append("  .amdhsa_accum_offset 256")
    a.l.append("  .amdhsa_group_segment_fixed_size 0")
    a.l.append("  .amdhsa_kernarg_size 48")
    a.l.append("  .amdhsa_user_sgpr_count 2")
    a.l.append("  .amdhsa_user_sgpr_kernarg_segment_ptr 1")
    a.l.append("  .amdhsa_system_sgpr_workgroup_id_x 1")
    a.l.append(".end_amdhsa_kernel")
    return a.text()

if __name__ == "__main__":
    out = sys.argv[1] if len(sys.argv) > 1 else OUT
    open(out, "w").write(gen())
    print("wrote", out)
```

```python
import sys, struct, math

NAME = "standalone__gqa_softmax__near_ridge"
OUT = f"cdna_kernels/{NAME}.s"

def f32bits(x):
    return struct.unpack("<I", struct.pack("<f", x))[0]

CSCALE = (128 ** -0.5) * math.log2(math.e)
LTHRESH = 2.0 ** 40

KRING = 0
VRING = 65536
LAREA = 131072
CNT = LAREA + 1024
LDS_BYTES = LAREA + 1024 + 64
CAREA = VRING

DBG = False
FLAGS = set()
class A:
    def __init__(s):
        s.l = []
    def stamp(s, i):
        if DBG:
            s.e(f"s_memtime s[{60+2*i}:{61+2*i}]")
    def rstamp(s, i):
        if DBG:
            s.e(f"s_memrealtime s[{60+2*i}:{61+2*i}]")
    def dump(s):
        if not DBG: return
        s.e("s_load_dwordx2 s[56:57], s[0:1], 40")
        s.e("s_waitcnt vmcnt(0) lgkmcnt(0)")
        s.e("s_memtime s[72:73]")
        s.e("s_memrealtime s[74:75]")
        s.e("s_waitcnt lgkmcnt(0)")
        s.e(f"s_lshl_b32 s58, s2, 3")
        s.e(f"s_add_u32 s58, s58, s{sWAVE}")
        s.e("s_lshl_b32 s58, s58, 5")
        s.e("v_mov_b32 v250, s58")
        s.e("s_mov_b64 exec, 1")
        s.e("v_mov_b32 v251, s60")
        s.e("global_store_dword v250, v251, s[56:57]")
        for i in range(2, 7):
            s.e(f"s_sub_u32 s59, s{60+2*i}, s62")
            s.e("v_mov_b32 v251, s59")
            s.e(f"global_store_dword v250, v251, s[56:57] offset:{4*(i-1)}")
        s.e("v_mov_b32 v251, s74")
        s.e("global_store_dword v250, v251, s[56:57] offset:28")
        if "hdbg" in FLAGS:
            s.e("s_load_dwordx2 s[56:57], s[0:1], 32")
            s.e("s_waitcnt lgkmcnt(0)")
            s.e(f"s_cmp_ge_u32 s{sWAVE}, 4")
            s.e("s_cselect_b32 s58, 32, 0")
            s.e("v_mov_b32 v250, s58")
            s.e("s_not_b32 s59, s60")
            s.e("v_mov_b32 v251, s59")
            s.e("global_atomic_umax v250, v251, s[56:57]")
            for i in range(2, 7):
                s.e(f"s_sub_u32 s59, s{60+2*i}, s62")
                s.e("v_mov_b32 v251, s59")
                s.e(f"global_atomic_umax v250, v251, s[56:57] offset:{4*(i-1)}")
            s.e("v_mov_b32 v251, s60")
            s.e("global_atomic_umax v250, v251, s[56:57] offset:24")
            s.e("v_mov_b32 v251, s74")
            s.e("global_atomic_umax v250, v251, s[56:57] offset:28")
        s.e("s_waitcnt vmcnt(0)")
    def e(s, t):
        s.l.append("  " + t)
    def lab(s, t):
        s.l.append(t + ":")
    def c(s, t):
        s.l.append("  ; " + t)
    def text(s):
        return "\n".join(s.l) + "\n"

def vr(b, n):
    return f"v[{b}:{b+n-1}]"

vLANE = 1
vKA = [4, 5]; vVA = 6; vKC = [7, 8]; vVC = 9
vL = [10, 11]; vQO = 12
vT = [13, 14, 15, 2, 3]
vQ = 16; vNEGM = 48; vS = [64, 80]; vP = [96, 104]; vK = 112; vV = 144; vO = 176
vX = 240

sWAVE = 3
sQSRD = 8; sKSRD = 12; sVSRD = 16; sOSRD = 20; sDSRD = 24
sG = 32; sMEM = 33; sHEAD = 34; sQOFF = 35; sKVOFF = 36; sC = 37; sLOOP = 38; sKB = 39; sVB = 40
sN = 41; sH = 42; sLDSB = 43; sOFF = 44; sNEXT = 45; sT0 = 46; sT1 = 47; sT2 = 48; sTHR = 49
sK = 50

class LG:
    def __init__(s):
        s.n = 0
        s.done = 0
        s.tag = {}
    def issue(s, tag):
        s.tag[tag] = s.n
        s.n += 1
    def need(s, a, tags):
        m = max(s.tag[t] for t in tags)
        if m < s.done:
            return
        cnt = s.n - 1 - m
        assert cnt <= 15, cnt
        a.e(f"s_waitcnt lgkmcnt({cnt})")
        s.done = m + 1

def mfma32(a, d, A_, B_, c):
    cs = c if isinstance(c, str) else vr(c, 16)
    a.e(f"v_mfma_f32_32x32x16_bf16 {vr(d,16)}, {vr(A_,4)}, {vr(B_,4)}, {cs}")

def mfma16(a, d, A_, B_, c):
    cs = c if isinstance(c, str) else vr(c, 4)
    a.e(f"v_mfma_f32_16x16x32_bf16 {vr(d,4)}, {vr(A_,4)}, {vr(B_,4)}, {cs}")

def kread(a, lg, s, slotoff, addr=None):
    ad = (addr or vKA)[s & 1]
    a.e(f"ds_read_b128 {vr(vK+4*s,4)}, v{ad} offset:{slotoff + (s>>1)*2048}")
    lg.issue(("K", s))

def vread(a, lg, n, slotoff):
    f = n >> 1; jj = n & 1
    ks = f >> 2; t = f & 3
    a.e(f"ds_read_b64_tr_b16 {vr(vV+4*f+2*jj,2)}, v{vVA} offset:{slotoff + t*2048 + ks*1024 + jj*512}")
    lg.issue(("V", n))

def E(a, buf, e):
    if "noexp" not in FLAGS: a.e(f"v_exp_f32 v{vS[buf]+e}, v{vS[buf]+e}")
def Ad(a, buf, e):
    if "noadd" not in FLAGS: a.e(f"v_add_f32 v{vL[e&1]}, v{vL[e&1]}, v{vS[buf]+e}")
def Cv(a, buf, k): a.e(f"v_cvt_pk_bf16_f32 v{vP[buf]+k}, v{vS[buf]+2*k}, v{vS[buf]+2*k+1}")

def slot(a, lg, par, qk=True, kr=True, bar=True, smn=True, extra=None):
    cur = par; nxt = 1 - par
    voff = par * 8192
    koff = par * 8192
    extra = extra or {}
    vn = 0; kn = 0
    for g in range(16):
        if g < 8:
            if qk and g % 2 == 0:
                lg.need(a, [("K", g), ("K", g + 1)])
        else:
            if g % 2 == 0:
                f = g - 8
                lg.need(a, [("V", 2 * f + 1), ("V", 2 * f + 3)])
        if g < 8:
            if qk:
                mfma32(a, vS[nxt], vK + 4 * g, vQ + 4 * g, vNEGM if g == 0 else vS[nxt])
        else:
            ks = (g - 8) >> 2; t = g & 3
            mfma32(a, vO + 16 * t, vV + 4 * (ks * 4 + t), vP[cur] + 4 * ks, vO + 16 * t)
        nreads = 2 if g % 2 else 1
        reads = []
        for _ in range(nreads):
            if g <= 10:
                reads.append(("V", vn)); vn += 1
            elif kr:
                reads.append(("K", kn)); kn += 1
        def rd():
            if reads:
                k, i = reads.pop(0)
                if "nolds" in FLAGS:
                    lg.issue((k, i)); lg.done = lg.n
                    return
                if k == "V": vread(a, lg, i, voff)
                else: kread(a, lg, i, koff)
        rd(); rd()
        if g <= 9:
            e = g + 6
            E(a, cur, e); Ad(a, cur, e - 1)
            if e % 2 == 0: Cv(a, cur, (e - 2) // 2)
        else:
            e = g - 10
            if smn: E(a, nxt, e)
            if e == 0:
                Ad(a, cur, 15); Cv(a, cur, 7)
            elif smn:
                Ad(a, nxt, e - 1)
                if e % 2 == 0: Cv(a, nxt, (e - 2) // 2)
        if g == 10 and bar and "nobar" not in FLAGS:
            a.e("s_barrier")
        for x in extra.get(g, []):
            a.e(x)

def scale_q(a, base, n, t0, t1):
    for i in range(n):
        r = base + i
        a.e(f"v_lshlrev_b32 v{t0}, 16, v{r}")
        a.e(f"v_and_b32 v{t1}, 0xffff0000, v{r}")
        a.e(f"v_mul_f32 v{t0}, s{sC}, v{t0}")
        a.e(f"v_mul_f32 v{t1}, s{sC}, v{t1}")
        a.e(f"v_cvt_pk_bf16_f32 v{r}, v{t0}, v{t1}")

def gen():
    a = A()
    hdr = open(f"cdna_kernels/{NAME}.s.ref").read().split("; @launch")[0]
    a.l.append(hdr.rstrip("\n"))
    a.l.append(f"; @launch grid=(256,1,1) block=(512,1,1) lds={LDS_BYTES}")
    a.l.append('.amdgcn_target "amdgcn-amd-amdhsa--gfx950"')
    a.l.append(".text")
    a.l.append(f".globl {NAME}_kernel")
    a.l.append(".p2align 8")
    a.l.append(f".type {NAME}_kernel,@function")
    a.lab(f"{NAME}_kernel")
    a.e("s_cmp_ge_u32 s2, 256")
    a.e("s_cbranch_scc1 L_end")
    a.rstamp(0); a.stamp(1)
    a.e("s_load_dwordx4 s[4:7], s[0:1], 0")
    a.e("s_load_dwordx4 s[28:31], s[0:1], 16")
    a.e("v_lshrrev_b32 v1, 6, v0")
    a.e(f"s_and_b32 s{sG}, s2, 7")
    a.e(f"v_readfirstlane_b32 s{sWAVE}, v1")
    a.e(f"v_and_b32 v{vLANE}, 63, v0")
    a.e(f"s_lshr_b32 s{sMEM}, s2, 5")
    a.e(f"s_lshl_b32 s{sMEM}, s{sMEM}, 3")
    a.e(f"s_add_u32 s{sG}, s{sG}, s{sMEM}")
    a.e(f"s_lshr_b32 s{sMEM}, s2, 3")
    a.e(f"s_and_b32 s{sMEM}, s{sMEM}, 3")
    a.e(f"s_lshl_b32 s{sHEAD}, s{sG}, 2")
    a.e(f"s_add_u32 s{sHEAD}, s{sHEAD}, s{sMEM}")
    a.e(f"s_mul_i32 s{sQOFF}, s{sHEAD}, 36864")
    a.e(f"s_lshl_b32 s{sKVOFF}, s{sG}, 18")
    a.e(f"s_mov_b32 s{sC}, {f32bits(CSCALE):#x}")
    a.e(f"s_mov_b32 s{sTHR}, {f32bits(LTHRESH):#x}")
    a.e("s_waitcnt lgkmcnt(0)")
    for srd, p, nb in ((sQSRD, 4, 9437184), (sKSRD, 6, 16777216), (sVSRD, 28, 16777216), (sOSRD, 30, 9437184)):
        a.e(f"s_mov_b32 s{srd}, s{p}")
        a.e(f"s_and_b32 s{srd+1}, s{p+1}, 0xffff")
        a.e(f"s_mov_b32 s{srd+2}, {nb}")
        a.e(f"s_mov_b32 s{srd+3}, 0x20000")
    a.e(f"s_cmp_ge_u32 s{sWAVE}, 4")
    a.e("s_cbranch_scc1 L_helper")

    a.c("---- main wave ----")
    a.e(f"v_and_b32 v2, 31, v{vLANE}")
    a.e(f"v_lshrrev_b32 v3, 5, v{vLANE}")
    a.e(f"s_lshl_b32 s{sT0}, s{sWAVE}, 13")
    a.e(f"v_lshlrev_b32 v{vQO}, 8, v2")
    a.e(f"v_lshl_add_u32 v{vQO}, v3, 4, v{vQO}")
    a.e(f"v_add_u32 v{vQO}, s{sT0}, v{vQO}")
    for s in range(8):
        a.e(f"buffer_load_dwordx4 {vr(vQ+4*s,4)}, v{vQO}, s[{sQSRD}:{sQSRD+3}], s{sQOFF} offen offset:{32*s}")
    a.e("v_bfe_u32 v13, v2, 2, 2")
    a.e("v_xor_b32 v14, v13, v3")
    a.e("v_lshlrev_b32 v14, 4, v14")
    a.e(f"v_lshl_add_u32 v{vKC[0]}, v2, 6, v14")
    a.e(f"v_xor_b32 v{vKC[1]}, 32, v{vKC[0]}")
    a.e(f"v_bfe_u32 v13, v{vLANE}, 2, 2")
    a.e("v_lshl_add_u32 v13, v3, 2, v13")
    a.e("v_lshlrev_b32 v13, 6, v13")
    a.e(f"v_bfe_u32 v14, v{vLANE}, 4, 1")
    a.e("v_lshl_add_u32 v13, v14, 5, v13")
    a.e(f"v_and_b32 v14, 3, v{vLANE}")
    a.e(f"v_lshl_add_u32 v{vVC}, v14, 3, v13")
    a.e(f"v_add_u32 v{vVC}, {VRING:#x}, v{vVC}")
    a.e(f"v_mov_b32 v{vVA}, v{vVC}")
    a.e(f"v_mov_b32 v{vL[0]}, 0")
    a.e(f"v_mov_b32 v{vL[1]}, 0")
    for i in range(64):
        a.e(f"v_mov_b32 v{vO+i}, 0")
    a.e(f"s_mov_b32 s{sKB}, 0")
    a.e(f"s_mov_b32 s{sVB}, 0")
    a.e(f"s_mov_b32 s{sLOOP}, {(-15) & 0xffffffff:#x}")
    for half in range(2):
        a.e(f"s_waitcnt vmcnt({4 - 4*half})")
        scale_q(a, vQ + 16 * half, 16, 13, 14)
    lg = LG()
    a.stamp(2)
    if DBG: a.e("s_waitcnt lgkmcnt(0)")
    a.e("s_barrier")
    for s in range(8):
        kread(a, lg, s, 0, addr=vKC)
    for s in range(8):
        lg.need(a, [("K", s)])
        mfma32(a, vS[0], vK + 4 * s, vQ + 4 * s, "0" if s == 0 else vS[0])
    a.e("s_barrier")
    for s in range(8):
        kread(a, lg, s, 8192, addr=vKC)
    a.e("s_nop 7")
    S = vS[0]
    a.e(f"v_max3_f32 v13, v{S}, v{S+1}, v{S+2}")
    a.e(f"v_max3_f32 v14, v{S+3}, v{S+4}, v{S+5}")
    a.e(f"v_max3_f32 v13, v13, v{S+6}, v{S+7}")
    a.e(f"v_max3_f32 v14, v14, v{S+8}, v{S+9}")
    a.e(f"v_max3_f32 v13, v13, v{S+10}, v{S+11}")
    a.e(f"v_max3_f32 v14, v14, v{S+12}, v{S+13}")
    a.e(f"v_max3_f32 v13, v13, v{S+14}, v{S+15}")
    a.e("v_max_f32 v13, v13, v14")
    a.e("v_mov_b32 v14, v13")
    a.e("s_nop 1")
    a.e("v_permlane32_swap_b32 v13, v14")
    a.e("v_max_f32 v13, v13, v14")
    for i in range(16):
        a.e(f"v_sub_f32 v{vNEGM+i}, 0, v13")
    for i in range(16):
        a.e(f"v_sub_f32 v{S+i}, v{S+i}, v13")
    for e in range(6):
        E(a, 0, e)
        if e >= 1: Ad(a, 0, e - 1)
        else: a.e("s_nop 0")
        if e >= 2 and e % 2 == 0: Cv(a, 0, (e - 2) // 2)
    a.stamp(3)
    if DBG: a.e("s_waitcnt lgkmcnt(0)")
    a.l.append(".p2align 6")
    a.lab("L_main_loop")
    ex0 = {0: [f"s_add_u32 s{sKB}, s{sKB}, 0x4000"], 2: [f"s_and_b32 s{sKB}, s{sKB}, 0xffff"],
           4: [f"v_add_u32 v{vKA[0]}, s{sKB}, v{vKC[0]}"], 6: [f"v_add_u32 v{vKA[1]}, s{sKB}, v{vKC[1]}"]}
    ex1 = {2: [f"s_add_u32 s{sVB}, s{sVB}, 0x4000"], 4: [f"s_and_b32 s{sVB}, s{sVB}, 0xffff"],
           12: [f"v_add_u32 v{vVA}, s{sVB}, v{vVC}"], 14: [f"s_add_u32 s{sLOOP}, s{sLOOP}, 1"]}
    st0 = (lg.n - lg.done)
    slot(a, lg, 0, extra=ex0)
    slot(a, lg, 1, extra=ex1)
    assert "nolds" in FLAGS or (lg.n - lg.done) == st0, (lg.n - lg.done, st0)
    a.e("s_cbranch_scc0 L_main_loop")
    slot(a, lg, 0, kr=False)
    slot(a, lg, 1, qk=False, kr=False, bar=False, smn=False)
    a.stamp(4); a.stamp(5)
    a.e(f"v_add_f32 v13, v{vL[0]}, v{vL[1]}")
    a.e("v_mov_b32 v14, v13")
    a.e("s_nop 1")
    a.e("v_permlane32_swap_b32 v13, v14")
    a.e("v_add_f32 v13, v13, v14")
    a.e("v_rcp_f32 v15, v13")
    a.e("s_nop 7")
    for t in range(4):
        for k in range(2):
            o = vO + 16 * t + 8 * k
            x = vX + 4 * ((2 * t + k) % 4)
            for i in range(8):
                a.e(f"v_mul_f32 v{o+i}, v{o+i}, v15")
            for i in range(4):
                a.e(f"v_cvt_pk_bf16_f32 v{x+i}, v{o+2*i}, v{o+2*i+1}")
            a.e("s_nop 1")
            a.e(f"v_permlane32_swap_b32 v{x}, v{x+2}")
            a.e(f"v_permlane32_swap_b32 v{x+1}, v{x+3}")
            a.e(f"buffer_store_dwordx4 {vr(x,4)}, v{vQO}, s[{sOSRD}:{sOSRD+3}], s{sQOFF} offen offset:{64*t+32*k}")
    a.dump()
    a.e("s_endpgm")

    hDMA = 4; hKC = 5; hVC = 6; hKA = 7; hVA = 8; hQO = 9; hL = 10
    hQ = 16; hNEGM = 32; hS = [36, 40]; hP = 44; hK = 48; hV = 80; hO = 112; hX = 144
    a.lab("L_helper")
    a.e("s_setprio 2")
    a.e(f"s_sub_u32 s{sH}, s{sWAVE}, 4")
    a.e(f"s_lshr_b32 s{sT0}, s{sH}, 1")
    a.e(f"s_and_b32 s{sT1}, s{sH}, 1")
    a.e(f"s_sub_u32 s{sOFF}, 1, s{sT0}")
    a.e(f"s_cmp_eq_u32 s{sT0}, 1")
    a.e(f"s_cselect_b32 s{sDSRD}, s{sVSRD}, s{sKSRD}")
    a.e(f"s_cselect_b32 s{sDSRD+1}, s{sVSRD+1}, s{sKSRD+1}")
    a.e(f"s_mov_b32 s{sDSRD+2}, 16777216")
    a.e(f"s_mov_b32 s{sDSRD+3}, 0x20000")
    a.e(f"s_cselect_b32 s{sT2}, 0, 3")
    a.e(f"s_lshl_b32 s{sLDSB}, s{sT0}, 16")
    a.e(f"s_lshl_b32 s{sT0}, s{sT1}, 10")
    a.e(f"s_add_u32 s{sLDSB}, s{sLDSB}, s{sT0}")
    a.e(f"v_and_b32 v2, 15, v{vLANE}")
    a.e(f"v_lshrrev_b32 v3, 4, v{vLANE}")
    a.e(f"v_lshlrev_b32 v{hQO}, 8, v2")
    a.e(f"v_lshl_add_u32 v{hQO}, v3, 4, v{hQO}")
    a.e(f"v_add_u32 v{hQO}, 0x8000, v{hQO}")
    for s in range(4):
        a.e(f"buffer_load_dwordx4 {vr(hQ+4*s,4)}, v{hQO}, s[{sQSRD}:{sQSRD+3}], s{sQOFF} offen offset:{64*s}")
    a.e(f"v_and_b32 v13, s{sT2}, v3")
    a.e(f"v_and_b32 v14, 3, v{vLANE}")
    a.e("v_xor_b32 v13, v13, v14")
    a.e("v_lshlrev_b32 v13, 4, v13")
    a.e(f"v_lshrrev_b32 v14, 2, v{vLANE}")
    a.e(f"v_lshl_add_u32 v{hDMA}, v14, 8, v13")
    a.e(f"s_lshl_b32 s{sT1}, s{sT1}, 12")
    a.e(f"v_add_u32 v{hDMA}, s{sT1}, v{hDMA}")
    a.e(f"s_mov_b32 s{sNEXT}, 0")

    def issue():
        a.e(f"s_and_b32 s{sT0}, s{sNEXT}, 7")
        a.e(f"s_lshl_b32 s{sT0}, s{sT0}, 13")
        a.e(f"s_add_u32 s{sT0}, s{sT0}, s{sLDSB}")
        a.e(f"s_lshl_b32 s{sT1}, s{sNEXT}, 13")
        a.e(f"s_add_u32 s{sT1}, s{sT1}, s{sKVOFF}")
        for t in range(4):
            a.e(f"s_add_u32 m0, s{sT0}, {t*2048 - t*64}")
            a.e("s_nop 0")
            a.e(f"buffer_load_dwordx4 v{hDMA}, s[{sDSRD}:{sDSRD+3}], s{sT1} offen offset:{t*64} lds")
        a.e(f"s_add_u32 s{sNEXT}, s{sNEXT}, 1")

    a.e(f"s_add_u32 s{sT2}, s{sOFF}, 5")
    a.lab("L_h_init")
    issue()
    a.e(f"s_cmp_lt_u32 s{sNEXT}, s{sT2}")
    a.e("s_cbranch_scc1 L_h_init")
    a.e(f"v_bfe_u32 v13, v{vLANE}, 2, 2")
    a.e("v_xor_b32 v14, v13, v3")
    a.e("v_lshlrev_b32 v14, 4, v14")
    a.e(f"v_lshl_add_u32 v{hKC}, v2, 6, v14")
    a.e("v_lshl_add_u32 v13, v3, 2, v13")
    a.e("v_lshlrev_b32 v13, 6, v13")
    a.e(f"v_and_b32 v14, 3, v{vLANE}")
    a.e(f"v_lshl_add_u32 v{hVC}, v14, 3, v13")
    a.e(f"v_add_u32 v{hVC}, {VRING:#x}, v{hVC}")
    a.e(f"v_mov_b32 v{hL}, 0")
    for i in range(32):
        a.e(f"v_mov_b32 v{hO+i}, 0")
    a.e(f"v_mov_b32 v13, {CNT:#x}")
    a.e("v_mov_b32 v14, 0")
    a.e("ds_write_b32 v13, v14")
    a.e("s_waitcnt vmcnt(20)")
    scale_q(a, hQ, 16, 13, 14)
    a.stamp(2); a.stamp(3)
    a.e(f"s_mov_b32 s{sN}, -1")

    def sync(tag):
        a.e(f"s_add_i32 s{sT0}, s{sN}, s{sOFF}")
        a.e(f"s_cmp_le_i32 s{sT0}, 26")
        a.e(f"s_cbranch_scc1 L_w20_{tag}")
        a.e(f"s_cmp_eq_i32 s{sT0}, 27")
        a.e(f"s_cbranch_scc1 L_w16_{tag}")
        a.e(f"s_cmp_eq_i32 s{sT0}, 28")
        a.e(f"s_cbranch_scc1 L_w12_{tag}")
        a.e(f"s_cmp_eq_i32 s{sT0}, 29")
        a.e(f"s_cbranch_scc1 L_w8_{tag}")
        a.e(f"s_cmp_eq_i32 s{sT0}, 30")
        a.e(f"s_cbranch_scc1 L_w4_{tag}")
        a.e("s_waitcnt vmcnt(0)")
        a.lab(f"L_w4_{tag}")
        a.e("s_waitcnt vmcnt(4)")
        a.lab(f"L_w8_{tag}")
        a.e("s_waitcnt vmcnt(8)")
        a.lab(f"L_w12_{tag}")
        a.e("s_waitcnt vmcnt(12)")
        a.lab(f"L_w16_{tag}")
        a.e("s_waitcnt vmcnt(16)")
        a.lab(f"L_w20_{tag}")
        a.e("s_waitcnt vmcnt(20) lgkmcnt(0)")
        if "nobar" in FLAGS:
            a.e(f"s_cmp_gt_i32 s{sN}, 0")
            a.e(f"s_cbranch_scc1 L_nb_{tag}")
        a.e("s_barrier")
        a.lab(f"L_nb_{tag}")
        a.e(f"s_cmp_gt_u32 s{sNEXT}, 31")
        a.e(f"s_cbranch_scc1 L_noissue_{tag}")
        issue()
        a.lab(f"L_noissue_{tag}")

    def h_kreads(addr):
        for u in range(2):
            for s in range(4):
                a.e(f"ds_read_b128 {vr(hK+(u*4+s)*4,4)}, v{addr} offset:{s*2048+u*1024}")

    a.lab("L_h_loop")
    a.e(f"s_cmp_gt_i32 s{sN}, 31")
    a.e("s_cbranch_scc1 L_h_nosync")
    sync("a")
    a.lab("L_h_nosync")
    a.e(f"s_cmp_gt_i32 s{sN}, 0")
    a.e("s_cbranch_scc1 L_h_dispatch")
    a.e(f"s_cmp_eq_i32 s{sN}, 0")
    a.e("s_cbranch_scc1 L_h_m9")
    h_kreads(hKC)
    a.e(f"s_add_i32 s{sN}, s{sN}, 1")
    a.e("s_branch L_h_loop")
    a.lab("L_h_m9")
    for u in range(2):
        for s in range(4):
            mfma16(a, hS[u], hK + (u * 4 + s) * 4, hQ + 4 * s, "0" if s == 0 else hS[u])
    a.e("s_nop 7")
    a.e("s_nop 1")
    a.e(f"v_max3_f32 v13, v{hS[0]}, v{hS[0]+1}, v{hS[0]+2}")
    a.e(f"v_max3_f32 v13, v13, v{hS[0]+3}, v{hS[1]}")
    a.e(f"v_max3_f32 v13, v13, v{hS[1]+1}, v{hS[1]+2}")
    a.e(f"v_max_f32 v13, v13, v{hS[1]+3}")
    a.e("v_mov_b32 v14, v13")
    a.e("s_nop 1")
    a.e("v_permlane32_swap_b32 v13, v14")
    a.e("v_max_f32 v13, v13, v14")
    a.e("v_mov_b32 v14, v13")
    a.e("s_nop 1")
    a.e("v_permlane16_swap_b32 v13, v14")
    a.e("v_max_f32 v13, v13, v14")
    for i in range(4):
        a.e(f"v_sub_f32 v{hNEGM+i}, 0, v13")
    a.lab("L_h_dispatch")
    a.e(f"s_sub_i32 s{sK}, s{sN}, s{sH}")
    a.e(f"s_add_i32 s{sN}, s{sN}, 1")
    a.e(f"s_cmp_lt_i32 s{sK}, 0")
    a.e("s_cbranch_scc1 L_h_loop")
    a.e(f"s_cmp_ge_i32 s{sK}, 32")
    a.e("s_cbranch_scc1 L_h_fin")
    if "nohelp" in FLAGS: a.e("s_branch L_h_loop")
    a.e(f"s_and_b32 s{sT0}, s{sK}, 3")
    a.e(f"s_cmp_eq_u32 s{sT0}, 1")
    a.e("s_cbranch_scc1 L_h_B")
    a.e(f"s_cmp_eq_u32 s{sT0}, 2")
    a.e("s_cbranch_scc1 L_h_C")
    a.e(f"s_cmp_eq_u32 s{sT0}, 3")
    a.e("s_cbranch_scc1 L_h_D")
    a.e(f"s_add_i32 s{sT0}, s{sK}, s{sH}")
    a.e(f"s_and_b32 s{sT0}, s{sT0}, 7")
    a.e(f"s_lshl_b32 s{sT0}, s{sT0}, 13")
    a.e(f"v_add_u32 v{hKA}, s{sT0}, v{hKC}")
    a.e(f"v_add_u32 v{hVA}, s{sT0}, v{hVC}")
    h_kreads(hKA)
    a.e("s_waitcnt lgkmcnt(4)")
    for s in range(4):
        mfma16(a, hS[0], hK + s * 4, hQ + 4 * s, hNEGM if s == 0 else hS[0])
    for t16 in range(8):
        for u in range(2):
            a.e(f"ds_read_b64_tr_b16 {vr(hV+4*t16+2*u,2)}, v{hVA} offset:{(t16>>1)*2048+(t16&1)*32+u*1024}")
        if t16 == 3:
            a.e("s_waitcnt lgkmcnt(4)")
    a.e("s_waitcnt lgkmcnt(0)")
    a.e("s_branch L_h_loop")
    def h_sm(u):
        S_ = hS[u]
        for i in range(4):
            a.e(f"v_exp_f32 v{S_+i}, v{S_+i}")
        a.e("s_nop 0")
        for i in range(4):
            a.e(f"v_add_f32 v{hL}, v{hL}, v{S_+i}")
        a.e(f"v_cvt_pk_bf16_f32 v{hP+2*u}, v{S_}, v{S_+1}")
        a.e(f"v_cvt_pk_bf16_f32 v{hP+2*u+1}, v{S_+2}, v{S_+3}")
    a.lab("L_h_B")
    for s in range(4):
        mfma16(a, hS[1], hK + (4 + s) * 4, hQ + 4 * s, hNEGM if s == 0 else hS[1])
    a.e("s_nop 7")
    h_sm(0)
    a.e("s_branch L_h_loop")
    a.lab("L_h_C")
    a.e("s_nop 7")
    h_sm(1)
    a.e("s_nop 1")
    for t16 in range(4):
        mfma16(a, hO + 4 * t16, hV + 4 * t16, hP, hO + 4 * t16)
    a.e("s_branch L_h_loop")
    a.lab("L_h_D")
    for t16 in range(4, 8):
        mfma16(a, hO + 4 * t16, hV + 4 * t16, hP, hO + 4 * t16)
    a.e("s_branch L_h_loop")
    a.lab("L_h_fin")
    a.stamp(4)
    a.e(f"v_mov_b32 v14, v{hL}")
    a.e("s_nop 1")
    a.e(f"v_permlane32_swap_b32 v{hL}, v14")
    a.e(f"v_add_f32 v{hL}, v{hL}, v14")
    a.e(f"v_mov_b32 v14, v{hL}")
    a.e("s_nop 1")
    a.e(f"v_permlane16_swap_b32 v{hL}, v14")
    a.e(f"v_add_f32 v{hL}, v{hL}, v14")
    a.e(f"s_lshl_b32 s{sT0}, s{sH}, 13")
    a.e(f"s_add_u32 s{sT0}, s{sT0}, {CAREA:#x}")
    a.e(f"v_lshlrev_b32 v13, 4, v{vLANE}")
    a.e(f"v_add_u32 v14, s{sT0}, v13")
    a.e("s_nop 4")
    for t16 in range(8):
        a.e(f"ds_write_b128 v14, {vr(hO+4*t16,4)} offset:{t16*1024}")
    a.e(f"s_lshl_b32 s{sT0}, s{sH}, 8")
    a.e(f"s_add_u32 s{sT0}, s{sT0}, {LAREA:#x}")
    a.e(f"v_lshlrev_b32 v15, 2, v{vLANE}")
    a.e(f"v_add_u32 v14, s{sT0}, v15")
    a.e(f"ds_write_b32 v14, v{hL}")
    a.e("s_waitcnt lgkmcnt(0)")
    a.e(f"v_mov_b32 v14, {CNT:#x}")
    a.e("v_mov_b32 v12, 1")
    a.e("s_mov_b64 exec, 1")
    a.e("ds_add_u32 v14, v12")
    a.e("s_mov_b64 exec, -1")
    a.lab("L_h_spin")
    a.e("ds_read_b32 v12, v14")
    a.e("s_waitcnt lgkmcnt(0)")
    a.e(f"v_readfirstlane_b32 s{sT0}, v12")
    a.e("s_nop 3")
    a.e(f"s_cmp_lt_u32 s{sT0}, 4")
    a.e("s_cbranch_scc1 L_h_spin")
    a.stamp(5)
    a.e(f"s_lshl_b32 s{sT0}, s{sH}, 11")
    a.e(f"s_add_u32 s{sT0}, s{sT0}, {CAREA:#x}")
    a.e(f"v_add_u32 v14, s{sT0}, v13")
    for x in range(4):
        for k in range(2):
            a.e(f"ds_read_b128 {vr(hX+(x*2+k)*4,4)}, v14 offset:{x*8192+k*1024}")
    a.e(f"v_add_u32 v14, {LAREA:#x}, v15")
    for x in range(4):
        a.e(f"ds_read_b32 v{hK+x}, v14 offset:{x*256}")
    a.e("s_waitcnt lgkmcnt(0)")
    a.e(f"v_add_f32 v13, v{hK}, v{hK+1}")
    a.e(f"v_add_f32 v14, v{hK+2}, v{hK+3}")
    a.e("v_add_f32 v13, v13, v14")
    a.e("v_rcp_f32 v15, v13")
    for k in range(2):
        for i in range(4):
            r0 = hX + k * 4 + i
            a.e(f"v_add_f32 v{r0}, v{r0}, v{r0+8}")
            a.e(f"v_add_f32 v{r0+16}, v{r0+16}, v{r0+24}")
            a.e(f"v_add_f32 v{r0}, v{r0}, v{r0+16}")
            a.e(f"v_mul_f32 v{r0}, v{r0}, v15")
    for k in range(2):
        r0 = hX + k * 4
        a.e(f"v_cvt_pk_bf16_f32 v{hK+8+2*k}, v{r0}, v{r0+1}")
        a.e(f"v_cvt_pk_bf16_f32 v{hK+8+2*k+1}, v{r0+2}, v{r0+3}")
    a.e(f"v_lshlrev_b32 v14, 8, v2")
    a.e(f"v_lshl_add_u32 v14, v3, 3, v14")
    a.e(f"s_lshl_b32 s{sT0}, s{sH}, 6")
    a.e(f"s_add_u32 s{sT0}, s{sT0}, 0x8000")
    a.e(f"v_add_u32 v14, s{sT0}, v14")
    for k in range(2):
        a.e(f"buffer_store_dwordx2 {vr(hK+8+2*k,2)}, v14, s[{sOSRD}:{sOSRD+3}], s{sQOFF} offen offset:{32*k}")
    a.dump()
    a.lab("L_end")
    a.e("s_endpgm")
    a.l.append('.section .rodata,"a"')
    a.l.append(".p2align 6")
    a.l.append(f".amdhsa_kernel {NAME}_kernel")
    a.l.append("  .amdhsa_next_free_vgpr 256")
    a.l.append("  .amdhsa_next_free_sgpr 80")
    a.l.append("  .amdhsa_accum_offset 256")
    a.l.append("  .amdhsa_group_segment_fixed_size 0")
    a.l.append("  .amdhsa_kernarg_size 48")
    a.l.append("  .amdhsa_user_sgpr_count 2")
    a.l.append("  .amdhsa_user_sgpr_kernarg_segment_ptr 1")
    a.l.append("  .amdhsa_system_sgpr_workgroup_id_x 1")
    a.l.append(".end_amdhsa_kernel")
    return a.text()

if __name__ == "__main__":
    out = sys.argv[1] if len(sys.argv) > 1 else OUT
    if len(sys.argv) > 2 and sys.argv[2] == "dbg": DBG = True
    FLAGS.update(sys.argv[3:])
    open(out, "w").write(gen())
    print("wrote", out)
```

```python
import sys, struct, math

NAME = "standalone__gqa_softmax__near_ridge"
OUT = f"cdna_kernels/{NAME}.s"

def f32bits(x):
    return struct.unpack("<I", struct.pack("<f", x))[0]

CSCALE = (128 ** -0.5) * math.log2(math.e)
LTHRESH = 2.0 ** 40

KRING = 0
VRING = 65536
LAREA = 131072
CNT = LAREA + 1024
SINK = LAREA + 2048
LDS_BYTES = SINK + 4096
CAREA = VRING
QST = VRING + 4 * 8192
Q9ST = KRING + 7 * 8192

DBG = False
FLAGS = set()
OPT = {"kv": "nt", "q": "nt", "st": "", "order": "lock"}

sWAVE = 3
class A:
    def __init__(s):
        s.l = []
    def e(s, t):
        s.l.append("  " + t)
    def lab(s, t):
        s.l.append(t + ":")
    def c(s, t):
        s.l.append("  ; " + t)
    def text(s):
        return "\n".join(s.l) + "\n"
    def pstamp(s, i):
        if DBG and "pst" in FLAGS:
            s.e(f"s_memtime s[{60+2*i}:{61+2*i}]")
            s.e("s_waitcnt lgkmcnt(0)")
    def stamp(s, i):
        if DBG and ("pst" not in FLAGS or i == 1):
            s.e(f"s_memtime s[{60+2*i}:{61+2*i}]")
    def rstamp(s, i):
        if DBG:
            s.e(f"s_memrealtime s[{60+2*i}:{61+2*i}]")
    def dump(s):
        if not DBG: return
        s.e("s_load_dwordx2 s[56:57], s[0:1], 40")
        s.e("s_waitcnt vmcnt(0) lgkmcnt(0)")
        s.e("s_memtime s[72:73]")
        s.e("s_memrealtime s[74:75]")
        s.e("s_waitcnt lgkmcnt(0)")
        s.e(f"s_lshl_b32 s58, s2, 3")
        s.e(f"s_add_u32 s58, s58, s{sWAVE}")
        s.e("s_lshl_b32 s58, s58, 5")
        s.e("v_mov_b32 v250, s58")
        s.e("s_mov_b64 exec, 1")
        s.e("v_mov_b32 v251, s60")
        s.e("global_store_dword v250, v251, s[56:57]")
        for i in range(2, 7):
            s.e(f"s_sub_u32 s59, s{60+2*i}, s62")
            s.e("v_mov_b32 v251, s59")
            s.e(f"global_store_dword v250, v251, s[56:57] offset:{4*(i-1)}")
        s.e("v_mov_b32 v251, s74")
        s.e("global_store_dword v250, v251, s[56:57] offset:28")
        s.e("s_waitcnt vmcnt(0)")

def vr(b, n):
    return f"v[{b}:{b+n-1}]"

vLANE = 1
vKA = [4, 5, 6, 7]; vVA = [8, 9]; vKC = [240, 241, 242, 243]; vVC = [244, 245]
vL = [10, 11]; vQO = 12
vQ = 16; vNEGM = 48; vS = [64, 80]; vP = [96, 104]; vK = 112; vV = 144; vO = 176
vX = 112

sQSRD = 8; sKSRD = 12; sVSRD = 16; sOSRD = 20; sDSRD = 24
sG = 32; sMEM = 33; sHEAD = 34; sQOFF = 35; sKVOFF = 36; sC = 37; sLOOP = 38; sKB = 39; sVB = 40
sN = 41; sH = 42; sLDSB = 43; sOFF = 44; sNEXT = 45; sT0 = 46; sT1 = 47; sT2 = 48; sTHR = 49
sK = 50; sT3 = 51; sGB = 52; sSINK = 53; sROT = 54; sBS = 55

class LG:
    def __init__(s):
        s.n = 0; s.done = 0; s.tag = {}
    def issue(s, tag):
        s.tag[tag] = s.n; s.n += 1
    def need(s, a, tags):
        m = max(s.tag[t] for t in tags)
        if m < s.done:
            return
        cnt = s.n - 1 - m
        assert cnt <= 15, cnt
        a.e(f"s_waitcnt lgkmcnt({cnt})")
        s.done = m + 1

def mfma32(a, d, A_, B_, c):
    cs = c if isinstance(c, str) else vr(c, 16)
    a.e(f"v_mfma_f32_32x32x16_bf16 {vr(d,16)}, {vr(A_,4)}, {vr(B_,4)}, {cs}")

def mfma16(a, d, A_, B_, c):
    cs = c if isinstance(c, str) else vr(c, 4)
    a.e(f"v_mfma_f32_16x16x32_bf16 {vr(d,4)}, {vr(A_,4)}, {vr(B_,4)}, {cs}")

def kread(a, lg, s, slotoff, addr=None, dst=None):
    ad = (addr or vKA)[s & 3]
    a.e(f"ds_read_b128 {vr((dst or vK)+4*s,4)}, v{ad} offset:{slotoff + (s>>2)*4096}")
    lg.issue(("K", s))

def vread(a, lg, n, slotoff):
    f = n >> 1; jj = n & 1
    ks = f >> 2; t = f & 3
    a.e(f"ds_read_b64_tr_b16 {vr(vV+4*f+2*jj,2)}, v{vVA[t&1]} offset:{slotoff + (t>>1)*4096 + ks*2048 + jj*1024}")
    lg.issue(("V", n))

def E(a, buf, e):
    if "noexp" not in FLAGS: a.e(f"v_exp_f32 v{vS[buf]+e}, v{vS[buf]+e}")
def Ad(a, buf, e):
    if "noadd" not in FLAGS: a.e(f"v_add_f32 v{vL[e&1]}, v{vL[e&1]}, v{vS[buf]+e}")
def Cv(a, buf, k): a.e(f"v_cvt_pk_bf16_f32 v{vP[buf]+k}, v{vS[buf]+2*k}, v{vS[buf]+2*k+1}")

def slot(a, lg, par, qk=True, kr=True, bar=True, smn=True, extra=None):
    cur = par; nxt = 1 - par
    voff = par * 8192
    koff = par * 8192
    extra = extra or {}
    vn = 0; kn = 0
    for g in range(16):
        if g < 8:
            if qk and g % 2 == 0:
                lg.need(a, [("K", g), ("K", g + 1)])
        else:
            if g % 2 == 0:
                f = g - 8
                lg.need(a, [("V", 2 * f + 1), ("V", 2 * f + 3)])
        if g < 8:
            if qk:
                mfma32(a, vS[nxt], vK + 4 * g, vQ + 4 * g, vNEGM if g == 0 else vS[nxt])
        else:
            ks = (g - 8) >> 2; t = g & 3
            mfma32(a, vO + 16 * t, vV + 4 * (ks * 4 + t), vP[cur] + 4 * ks, vO + 16 * t)
        nreads = 2 if g % 2 else 1
        for _ in range(nreads):
            if g <= 10:
                if "nolds" in FLAGS: lg.issue(("V", vn)); lg.done = lg.n
                else: vread(a, lg, vn, voff)
                vn += 1
            elif kr:
                if "nolds" in FLAGS: lg.issue(("K", kn)); lg.done = lg.n
                else: kread(a, lg, kn, koff)
                kn += 1
        if g <= 9:
            e = g + 6
            E(a, cur, e); Ad(a, cur, e - 1)
            if e % 2 == 0: Cv(a, cur, (e - 2) // 2)
        else:
            e = g - 10
            if smn: E(a, nxt, e)
            if e == 0:
                Ad(a, cur, 15); Cv(a, cur, 7)
            elif smn:
                Ad(a, nxt, e - 1)
                if e % 2 == 0: Cv(a, nxt, (e - 2) // 2)
        if g == 10 and bar and "nobar" not in FLAGS:
            a.e("s_barrier")
        for x in extra.get(g, []):
            a.e(x)

def scale_q(a, base, n, t):
    for i in range(0, n, 2):
        r = base + i
        a.e(f"v_lshlrev_b32 v{t[0]}, 16, v{r}")
        a.e(f"v_and_b32 v{t[1]}, 0xffff0000, v{r}")
        a.e(f"v_lshlrev_b32 v{t[2]}, 16, v{r+1}")
        a.e(f"v_and_b32 v{t[3]}, 0xffff0000, v{r+1}")
        for k in range(4):
            a.e(f"v_mul_f32 v{t[k]}, s{sC}, v{t[k]}")
        a.e(f"v_cvt_pk_bf16_f32 v{r}, v{t[0]}, v{t[1]}")
        a.e(f"v_cvt_pk_bf16_f32 v{r+1}, v{t[2]}, v{t[3]}")

def kpat(a, d0, d1, lane, t0, t1):
    a.e(f"v_lshrrev_b32 v{t0}, 4, v{lane}")
    a.e(f"v_and_b32 v{t1}, 7, v{lane}")
    a.e(f"v_xor_b32 v{t0}, v{t0}, v{t1}")
    a.e(f"v_lshlrev_b32 v{t0}, 4, v{t0}")
    a.e(f"v_lshrrev_b32 v{t1}, 3, v{lane}")
    a.e(f"v_lshl_add_u32 v{d0}, v{t1}, 8, v{t0}")
    a.e(f"v_xor_b32 v{d1}, 64, v{d0}")

def gen():
    a = A()
    kvb = (" " + OPT["kv"]) if OPT["kv"] else ""
    qb = (" " + OPT["q"]) if OPT["q"] else ""
    stb = (" " + OPT["st"]) if OPT["st"] else ""
    hdr = open(f"cdna_kernels/{NAME}.s.ref").read().split("; @launch")[0]
    a.l.append(hdr.rstrip("\n"))
    a.l.append(f"; @launch grid=(256,1,1) block=(512,1,1) lds={LDS_BYTES}")
    a.l.append('.amdgcn_target "amdgcn-amd-amdhsa--gfx950"')
    a.l.append(".text")
    a.l.append(f".globl {NAME}_kernel")
    a.l.append(".p2align 8")
    a.l.append(f".type {NAME}_kernel,@function")
    a.lab(f"{NAME}_kernel")
    a.e("s_cmp_ge_u32 s2, 256")
    a.e("s_cbranch_scc1 L_end")
    a.rstamp(0); a.stamp(1)
    a.e("s_load_dwordx4 s[4:7], s[0:1], 0")
    a.e("s_load_dwordx4 s[28:31], s[0:1], 16")
    a.e("v_lshrrev_b32 v1, 6, v0")
    a.e(f"s_and_b32 s{sG}, s2, 7")
    a.e(f"v_readfirstlane_b32 s{sWAVE}, v1")
    a.e(f"v_and_b32 v{vLANE}, 63, v0")
    a.e(f"s_lshr_b32 s{sMEM}, s2, 5")
    a.e(f"s_lshl_b32 s{sMEM}, s{sMEM}, 3")
    a.e(f"s_add_u32 s{sG}, s{sG}, s{sMEM}")
    a.e(f"s_lshr_b32 s{sMEM}, s2, 3")
    a.e(f"s_and_b32 s{sMEM}, s{sMEM}, 3")
    a.e(f"s_lshl_b32 s{sHEAD}, s{sG}, 2")
    a.e(f"s_add_u32 s{sHEAD}, s{sHEAD}, s{sMEM}")
    a.e(f"s_mul_i32 s{sQOFF}, s{sHEAD}, 36864")
    a.e(f"s_lshl_b32 s{sKVOFF}, s{sG}, 18")
    a.e(f"s_mov_b32 s{sC}, {f32bits(CSCALE):#x}")
    a.e(f"s_mov_b32 s{sTHR}, {f32bits(LTHRESH):#x}")
    kpat(a, 14, 15, vLANE, 2, 3)
    a.e("s_waitcnt lgkmcnt(0)")
    a.pstamp(2)
    for srd, p, nb in ((sQSRD, 4, 9437184), (sKSRD, 6, 16777216), (sVSRD, 28, 16777216), (sOSRD, 30, 9437184)):
        a.e(f"s_mov_b32 s{srd}, s{p}")
        a.e(f"s_and_b32 s{srd+1}, s{p+1}, 0xffff")
        a.e(f"s_mov_b32 s{srd+2}, {nb}")
        a.e(f"s_mov_b32 s{srd+3}, 0x20000")
    a.e(f"s_cmp_ge_u32 s{sWAVE}, 4")
    a.e("s_cbranch_scc1 L_helper")

    a.c("---- main wave ----")
    a.e(f"s_lshl_b32 s{sT0}, s{sWAVE}, 13")
    a.e(f"s_add_u32 s{sT1}, s{sT0}, s{sQOFF}")
    a.e(f"s_add_u32 s{sT2}, s{sT0}, {QST:#x}")
    for p in range(8):
        hf = p >> 2; rg = p & 3
        a.e(f"s_add_u32 m0, s{sT2}, {hf*4096 + rg*1024}")
        a.e(f"s_add_u32 s{sT3}, s{sT1}, {rg*2048 + hf*128}")
        a.e(f"buffer_load_dwordx4 v{14 + (rg&1)}, s[{sQSRD}:{sQSRD+3}], s{sT3} offen{qb} lds")
    a.e(f"v_and_b32 v2, 31, v{vLANE}")
    a.e(f"v_lshrrev_b32 v3, 5, v{vLANE}")
    a.e(f"v_lshlrev_b32 v{vQO}, 8, v2")
    a.e(f"v_lshl_add_u32 v{vQO}, v3, 4, v{vQO}")
    a.e(f"v_add_u32 v{vQO}, s{sT0}, v{vQO}")
    a.e("v_bfe_u32 v13, v2, 1, 3")
    a.e("v_xor_b32 v13, v13, v3")
    a.e("v_lshlrev_b32 v13, 4, v13")
    a.e(f"v_lshl_add_u32 v{vKC[0]}, v2, 7, v13")
    for e in range(1, 4):
        a.e(f"v_xor_b32 v{vKC[e]}, {32*e}, v{vKC[0]}")
    a.e(f"v_bfe_u32 v13, v{vLANE}, 2, 2")
    a.e("v_lshl_add_u32 v14, v3, 2, v13")
    a.e("v_lshlrev_b32 v14, 7, v14")
    a.e("v_lshrrev_b32 v13, 1, v13")
    a.e("v_lshl_add_u32 v14, v13, 6, v14")
    a.e(f"v_bfe_u32 v13, v{vLANE}, 4, 1")
    a.e("v_lshl_add_u32 v14, v13, 5, v14")
    a.e(f"v_and_b32 v13, 3, v{vLANE}")
    a.e(f"v_lshl_add_u32 v14, v13, 3, v14")
    a.e(f"v_add_u32 v{vVC[0]}, {VRING:#x}, v14")
    a.e(f"v_xor_b32 v{vVC[1]}, 64, v{vVC[0]}")
    a.e(f"v_mov_b32 v{vVA[0]}, v{vVC[0]}")
    a.e(f"v_mov_b32 v{vVA[1]}, v{vVC[1]}")
    for e in range(4):
        a.e(f"v_add_u32 v{vKA[e]}, s{sT2}, v{vKC[e]}")
    a.e(f"v_mov_b32 v{vL[0]}, 0")
    a.e(f"v_mov_b32 v{vL[1]}, 0")
    for i in range(64):
        a.e(f"v_mov_b32 v{vO+i}, 0")
    a.e(f"s_mov_b32 s{sKB}, 0")
    a.e(f"s_mov_b32 s{sVB}, 0")
    a.e(f"s_mov_b32 s{sLOOP}, {(-15) & 0xffffffff:#x}")
    lg = LG()
    a.pstamp(3)
    for half in range(2):
        a.e(f"s_waitcnt vmcnt({4 - 4*half})")
        for s in range(4 * half, 4 * half + 4):
            kread(a, lg, s, 0, dst=vQ)
    a.e("s_waitcnt lgkmcnt(0)")
    lg.done = lg.n
    a.stamp(2)
    a.pstamp(4)
    if DBG: a.e("s_waitcnt lgkmcnt(0)")
    a.e("s_barrier")
    a.pstamp(5)
    for s in range(8):
        kread(a, lg, s, 0, addr=vKC)
    for s in range(8):
        lg.need(a, [("K", s)])
        mfma32(a, vS[0], vK + 4 * s, vQ + 4 * s, "0" if s == 0 else vS[0])
        scale_q(a, vQ + 4 * s, 4, [13, 14, 15, 2])
    a.e("s_barrier")
    for s in range(8):
        kread(a, lg, s, 8192, addr=vKC)
    S = vS[0]
    a.e(f"v_max3_f32 v13, v{S}, v{S+1}, v{S+2}")
    a.e(f"v_max3_f32 v14, v{S+3}, v{S+4}, v{S+5}")
    a.e(f"v_max3_f32 v13, v13, v{S+6}, v{S+7}")
    a.e(f"v_max3_f32 v14, v14, v{S+8}, v{S+9}")
    a.e(f"v_max3_f32 v13, v13, v{S+10}, v{S+11}")
    a.e(f"v_max3_f32 v14, v14, v{S+12}, v{S+13}")
    a.e(f"v_max3_f32 v13, v13, v{S+14}, v{S+15}")
    a.e("v_max_f32 v13, v13, v14")
    a.e("v_mov_b32 v14, v13")
    a.e("s_nop 1")
    a.e("v_permlane32_swap_b32 v13, v14")
    a.e("v_max_f32 v13, v13, v14")
    a.e(f"v_mul_f32 v13, s{sC}, v13")
    for i in range(16):
        a.e(f"v_sub_f32 v{vNEGM+i}, 0, v13")
    for i in range(16):
        a.e(f"v_fma_f32 v{S+i}, v{S+i}, s{sC}, -v13")
    for e in range(6):
        E(a, 0, e)
        if e >= 1: Ad(a, 0, e - 1)
        else: a.e("s_nop 0")
        if e >= 2 and e % 2 == 0: Cv(a, 0, (e - 2) // 2)
    a.stamp(3)
    if DBG: a.e("s_waitcnt lgkmcnt(0)")
    a.l.append(".p2align 6")
    a.lab("L_main_loop")
    ex0 = {0: [f"s_add_u32 s{sKB}, s{sKB}, 0x4000"], 1: [f"s_and_b32 s{sKB}, s{sKB}, 0xffff"],
           2: [f"v_add_u32 v{vKA[0]}, s{sKB}, v{vKC[0]}"], 4: [f"v_add_u32 v{vKA[1]}, s{sKB}, v{vKC[1]}"],
           6: [f"v_add_u32 v{vKA[2]}, s{sKB}, v{vKC[2]}"], 8: [f"v_add_u32 v{vKA[3]}, s{sKB}, v{vKC[3]}"]}
    ex1 = {2: [f"s_add_u32 s{sVB}, s{sVB}, 0x4000"], 4: [f"s_and_b32 s{sVB}, s{sVB}, 0xffff"],
           6: [f"s_add_u32 s{sLOOP}, s{sLOOP}, 1"],
           12: [f"v_add_u32 v{vVA[0]}, s{sVB}, v{vVC[0]}"], 14: [f"v_add_u32 v{vVA[1]}, s{sVB}, v{vVC[1]}"]}
    st0 = (lg.n - lg.done)
    slot(a, lg, 0, extra=ex0)
    slot(a, lg, 1, extra=ex1)
    assert "nolds" in FLAGS or (lg.n - lg.done) == st0, (lg.n - lg.done, st0)
    a.e("s_cbranch_scc0 L_main_loop")
    slot(a, lg, 0, kr=False)
    slot(a, lg, 1, qk=False, kr=False, bar=False, smn=False)
    a.stamp(4); a.stamp(5)
    a.e(f"v_add_f32 v13, v{vL[0]}, v{vL[1]}")
    a.e("v_mov_b32 v14, v13")
    a.e("s_nop 1")
    a.e("v_permlane32_swap_b32 v13, v14")
    a.e("v_add_f32 v13, v13, v14")
    a.e("v_rcp_f32 v15, v13")
    a.e("s_nop 7")
    for t in range(4):
        for k in range(2):
            o = vO + 16 * t + 8 * k
            x = vX + 4 * (2 * t + k)
            for i in range(8):
                a.e(f"v_mul_f32 v{o+i}, v{o+i}, v15")
            for i in range(4):
                a.e(f"v_cvt_pk_bf16_f32 v{x+i}, v{o+2*i}, v{o+2*i+1}")
            a.e("s_nop 1")
            a.e(f"v_permlane32_swap_b32 v{x}, v{x+2}")
            a.e(f"v_permlane32_swap_b32 v{x+1}, v{x+3}")
            a.e(f"buffer_store_dwordx4 {vr(x,4)}, v{vQO}, s[{sOSRD}:{sOSRD+3}], s{sQOFF} offen offset:{64*t+32*k}{stb}")
    a.dump()
    a.e("s_endpgm")

    hD = [4, 5, 243, 244]; hKC = [6, 7]; hVC = [8, 9]; hKA = [11, 12]; hVA = [240, 241]; hL = 10
    hQ = 16; hNEGM = 32; hS = [36, 40]; hP = 44; hK = 48; hV = 80; hO = 112; hX = 144
    a.lab("L_helper")
    a.e("s_setprio 2")
    a.e(f"s_sub_u32 s{sH}, s{sWAVE}, 4")
    a.e(f"s_lshr_b32 s{sT0}, s{sH}, 1")
    a.e(f"s_and_b32 s{sT1}, s{sH}, 1")
    a.e(f"s_lshl_b32 s{sT2}, s{sT1}, 12")
    a.e(f"s_lshl_b32 s{sT3}, s{sT0}, 10")
    a.e(f"s_add_u32 s{sT2}, s{sT2}, s{sT3}")
    a.e(f"s_add_u32 m0, s{sT2}, {Q9ST:#x}")
    a.e(f"s_lshl_b32 s{sT2}, s{sT1}, 7")
    a.e(f"s_lshl_b32 s{sT3}, s{sT0}, 11")
    a.e(f"s_add_u32 s{sT2}, s{sT2}, s{sT3}")
    a.e(f"s_add_u32 s{sT2}, s{sT2}, s{sQOFF}")
    a.e(f"s_add_u32 s{sT2}, s{sT2}, 0x8000")
    a.e(f"s_cmp_eq_u32 s{sT0}, 1")
    a.e(f"s_cselect_b32 s{sT3}, 64, 0")
    a.e(f"v_xor_b32 v13, s{sT3}, v14")
    a.e(f"buffer_load_dwordx4 v13, s[{sQSRD}:{sQSRD+3}], s{sT2} offen{qb} lds")
    a.e(f"s_cselect_b32 s{sDSRD}, s{sVSRD}, s{sKSRD}")
    a.e(f"s_cselect_b32 s{sDSRD+1}, s{sVSRD+1}, s{sKSRD+1}")
    a.e("s_cbranch_scc1 L_h_vpat")
    a.e(f"v_mov_b32 v{hD[0]}, v14")
    a.e(f"v_add_u32 v{hD[1]}, 1024, v15")
    a.e("s_branch L_h_patdone")
    a.lab("L_h_vpat")
    a.e(f"v_bfe_u32 v2, v{vLANE}, 4, 1")
    a.e("v_lshlrev_b32 v2, 2, v2")
    a.e(f"v_and_b32 v3, 7, v{vLANE}")
    a.e("v_xor_b32 v2, v2, v3")
    a.e("v_lshlrev_b32 v2, 4, v2")
    a.e(f"v_lshrrev_b32 v3, 3, v{vLANE}")
    a.e(f"v_lshl_add_u32 v{hD[0]}, v3, 8, v2")
    a.e(f"v_add_u32 v{hD[1]}, 1024, v{hD[0]}")
    a.lab("L_h_patdone")
    a.e(f"v_add_u32 v{hD[2]}, 2048, v{hD[0]}")
    a.e(f"v_add_u32 v{hD[3]}, 2048, v{hD[1]}")
    a.e(f"s_add_u32 s{sDSRD}, s{sDSRD}, s{sKVOFF}")
    a.e(f"s_addc_u32 s{sDSRD+1}, s{sDSRD+1}, 0")
    a.e(f"s_mov_b32 s{sDSRD+2}, 262144")
    a.e(f"s_mov_b32 s{sDSRD+3}, 0x20000")
    a.e(f"s_sub_u32 s{sOFF}, 1, s{sT0}")
    a.e(f"s_lshl_b32 s{sLDSB}, s{sT0}, 16")
    a.e(f"s_lshl_b32 s{sT0}, s{sT1}, 12")
    a.e(f"s_add_u32 s{sLDSB}, s{sLDSB}, s{sT0}")
    a.e(f"s_lshl_b32 s{sGB}, s{sT1}, 7")
    a.e(f"s_mov_b32 s{sNEXT}, 0")
    a.e(f"s_mov_b32 s{sSINK}, {SINK:#x}")

    def issue():
        a.e(f"s_and_b32 s{sT0}, s{sNEXT}, 0xffff")
        a.e(f"s_add_u32 s{sT0}, s{sT0}, s{sLDSB}")
        a.e(f"s_cmp_lt_u32 s{sNEXT}, 0x40000")
        a.e(f"s_cselect_b32 m0, s{sT0}, s{sSINK}")
        if OPT["order"] == "lock":
            a.e(f"s_add_u32 s{sT1}, s{sNEXT}, s{sGB}")
        else:
            msk = {"rot4": 3, "rot8": 7}[OPT["order"]] << 13
            a.e(f"s_add_u32 s{sT1}, s{sNEXT}, s{sROT}")
            a.e(f"s_and_b32 s{sT1}, s{sT1}, {msk:#x}")
            a.e(f"s_andn2_b32 s{sT2}, s{sNEXT}, {msk:#x}")
            a.e(f"s_or_b32 s{sT1}, s{sT1}, s{sT2}")
            a.e(f"s_add_u32 s{sT1}, s{sT1}, s{sGB}")
        for rg in range(4):
            a.e(f"buffer_load_dwordx4 v{hD[rg]}, s[{sDSRD}:{sDSRD+3}], s{sT1} offen offset:{rg*1024}{kvb} lds")
        a.e(f"s_add_u32 s{sNEXT}, s{sNEXT}, 0x2000")

    a.e(f"s_lshl_b32 s{sROT}, s{sMEM}, {14 if OPT['order']=='rot8' else 13}")
    a.e(f"s_lshl_b32 s{sT3}, s{sOFF}, 13")
    a.lab("L_h_init")
    issue()
    a.e(f"s_cmp_le_u32 s{sNEXT}, s{sT3}")
    a.e("s_cbranch_scc1 L_h_init")
    a.e(f"v_and_b32 v2, 15, v{vLANE}")
    a.e(f"v_lshrrev_b32 v3, 4, v{vLANE}")
    a.e("v_lshrrev_b32 v13, 1, v2")
    a.e("v_xor_b32 v13, v13, v3")
    a.e("v_lshlrev_b32 v13, 4, v13")
    a.e(f"v_lshl_add_u32 v{hKC[0]}, v2, 7, v13")
    a.e(f"v_xor_b32 v{hKC[1]}, 64, v{hKC[0]}")
    a.e(f"v_bfe_u32 v13, v{vLANE}, 2, 2")
    a.e("v_lshl_add_u32 v14, v3, 2, v13")
    a.e("v_lshlrev_b32 v14, 7, v14")
    a.e("v_lshrrev_b32 v13, 1, v13")
    a.e("v_lshl_add_u32 v14, v13, 6, v14")
    a.e(f"v_and_b32 v13, 3, v{vLANE}")
    a.e("v_lshl_add_u32 v14, v13, 3, v14")
    a.e(f"v_add_u32 v{hVC[0]}, {VRING:#x}, v14")
    a.e(f"v_xor_b32 v{hVC[1]}, 64, v{hVC[0]}")
    a.e(f"v_mov_b32 v{hL}, 0")
    for i in range(32):
        a.e(f"v_mov_b32 v{hO+i}, 0")
    a.e(f"v_mov_b32 v13, {CNT:#x}")
    a.e("v_mov_b32 v14, 0")
    a.e("ds_write_b32 v13, v14")
    a.e(f"s_lshl_b32 s{sBS}, s{sH}, 13")
    a.stamp(2)

    def h_kreads(addr, off=0, us=(0, 1), dst=hK):
        for u in us:
            for s in range(4):
                a.e(f"ds_read_b128 {vr(dst+(u*4+s)*4,4)}, v{addr[s&1]} offset:{off+(s>>1)*4096+u*2048}")

    a.pstamp(3)
    a.e("s_waitcnt vmcnt(4) lgkmcnt(0)")
    a.pstamp(4)
    a.e("s_barrier")
    a.e(f"s_add_u32 s{sT3}, s{sNEXT}, {5*8192}")
    a.lab("L_h_flood")
    issue()
    a.e(f"s_cmp_lt_u32 s{sNEXT}, s{sT3}")
    a.e("s_cbranch_scc1 L_h_flood")
    a.pstamp(5)
    h_kreads(hKC, off=Q9ST, us=(0,), dst=hQ)
    h_kreads(hKC)
    a.e("s_waitcnt vmcnt(20) lgkmcnt(0)")
    a.e("s_barrier")
    issue()
    scale_q(a, hQ, 16, [13, 14, 15, 242])
    a.e("s_nop 1")
    for u in range(2):
        for s in range(4):
            mfma16(a, hS[u], hK + (u * 4 + s) * 4, hQ + 4 * s, "0" if s == 0 else hS[u])
    a.e("s_nop 7")
    a.e("s_nop 1")
    a.e(f"v_max3_f32 v13, v{hS[0]}, v{hS[0]+1}, v{hS[0]+2}")
    a.e(f"v_max3_f32 v13, v13, v{hS[0]+3}, v{hS[1]}")
    a.e(f"v_max3_f32 v13, v13, v{hS[1]+1}, v{hS[1]+2}")
    a.e(f"v_max_f32 v13, v13, v{hS[1]+3}")
    a.e("v_mov_b32 v14, v13")
    a.e("s_nop 1")
    a.e("v_permlane32_swap_b32 v13, v14")
    a.e("v_max_f32 v13, v13, v14")
    a.e("v_mov_b32 v14, v13")
    a.e("s_nop 1")
    a.e("v_permlane16_swap_b32 v13, v14")
    a.e("v_max_f32 v13, v13, v14")
    for i in range(4):
        a.e(f"v_sub_f32 v{hNEGM+i}, 0, v13")
    a.stamp(3)
    a.e(f"s_mov_b32 s{sN}, 31")
    cnt = [0]
    ool = []
    def sync(cond=True):
        cnt[0] += 1
        tag = cnt[0]
        if cond:
            a.e(f"s_sub_u32 s{sN}, s{sN}, 1")
            a.e(f"s_cbranch_scc1 L_sk_{tag}")
        a.e("s_waitcnt vmcnt(20) lgkmcnt(0)")
        if "nobar" not in FLAGS: a.e("s_barrier")
        issue()
        if cond:
            a.lab(f"L_sd_{tag}")
            ool.append(tag)
    a.e(f"s_mov_b32 s{sK}, s{sH}")
    a.lab("L_h_pre")
    a.e(f"s_sub_u32 s{sK}, s{sK}, 1")
    a.e("s_cbranch_scc1 L_h_go")
    a.e(f"s_sub_u32 s{sN}, s{sN}, 1")
    sync(cond=False)
    a.e("s_branch L_h_pre")
    a.lab("L_h_go")
    a.e(f"s_mov_b32 s{sK}, {(-8) & 0xffffffff:#x}")
    def h_sm(u):
        S_ = hS[u]
        for i in range(4):
            a.e(f"v_exp_f32 v{S_+i}, v{S_+i}")
        a.e("s_nop 0")
        for i in range(4):
            a.e(f"v_add_f32 v{hL}, v{hL}, v{S_+i}")
        a.e(f"v_cvt_pk_bf16_f32 v{hP+2*u}, v{S_}, v{S_+1}")
        a.e(f"v_cvt_pk_bf16_f32 v{hP+2*u+1}, v{S_+2}, v{S_+3}")
    a.l.append(".p2align 6")
    a.lab("L_h_loop")
    nh = "nohelp" in FLAGS
    if not nh:
        for e in range(2):
            a.e(f"v_add_u32 v{hKA[e]}, s{sBS}, v{hKC[e]}")
        for e in range(2):
            a.e(f"v_add_u32 v{hVA[e]}, s{sBS}, v{hVC[e]}")
        a.e(f"s_add_u32 s{sBS}, s{sBS}, 0x8000")
        a.e(f"s_and_b32 s{sBS}, s{sBS}, 0xffff")
        h_kreads(hKA)
        a.e("s_waitcnt lgkmcnt(4)")
        for s in range(4):
            mfma16(a, hS[0], hK + s * 4, hQ + 4 * s, hNEGM if s == 0 else hS[0])
        for t16 in range(4):
            for u in range(2):
                a.e(f"ds_read_b64_tr_b16 {vr(hV+4*t16+2*u,2)}, v{hVA[(t16>>1)&1]} offset:{(t16>>2)*4096+(t16&1)*32+u*2048}")
    sync()
    if not nh:
        for s in range(4):
            mfma16(a, hS[1], hK + (4 + s) * 4, hQ + 4 * s, hNEGM if s == 0 else hS[1])
        for t16 in range(4, 8):
            for u in range(2):
                a.e(f"ds_read_b64_tr_b16 {vr(hV+4*t16+2*u,2)}, v{hVA[(t16>>1)&1]} offset:{(t16>>2)*4096+(t16&1)*32+u*2048}")
        h_sm(0)
    sync()
    if not nh:
        h_sm(1)
        a.e("s_nop 1")
        for t16 in range(4):
            mfma16(a, hO + 4 * t16, hV + 4 * t16, hP, hO + 4 * t16)
    sync()
    if not nh:
        for t16 in range(4, 8):
            mfma16(a, hO + 4 * t16, hV + 4 * t16, hP, hO + 4 * t16)
    sync()
    a.e(f"s_add_u32 s{sK}, s{sK}, 1")
    a.e("s_cbranch_scc0 L_h_loop")
    a.e("s_branch L_h_fin")
    for tag in ool:
        a.lab(f"L_sk_{tag}")
        a.e(f"s_mov_b32 s{sN}, 0")
        a.e("s_waitcnt lgkmcnt(0)")
        a.e("s_nop 7")
        a.e(f"s_branch L_sd_{tag}")
    a.lab("L_h_fin")
    a.stamp(4)
    a.e(f"v_mov_b32 v14, v{hL}")
    a.e("s_nop 1")
    a.e(f"v_permlane32_swap_b32 v{hL}, v14")
    a.e(f"v_add_f32 v{hL}, v{hL}, v14")
    a.e(f"v_mov_b32 v14, v{hL}")
    a.e("s_nop 1")
    a.e(f"v_permlane16_swap_b32 v{hL}, v14")
    a.e(f"v_add_f32 v{hL}, v{hL}, v14")
    a.e(f"s_lshl_b32 s{sT0}, s{sH}, 13")
    a.e(f"s_add_u32 s{sT0}, s{sT0}, {CAREA:#x}")
    a.e(f"v_lshlrev_b32 v13, 4, v{vLANE}")
    a.e(f"v_add_u32 v14, s{sT0}, v13")
    a.e("s_nop 4")
    for t16 in range(8):
        a.e(f"ds_write_b128 v14, {vr(hO+4*t16,4)} offset:{t16*1024}")
    a.e(f"s_lshl_b32 s{sT0}, s{sH}, 8")
    a.e(f"s_add_u32 s{sT0}, s{sT0}, {LAREA:#x}")
    a.e(f"v_lshlrev_b32 v15, 2, v{vLANE}")
    a.e(f"v_add_u32 v14, s{sT0}, v15")
    a.e(f"ds_write_b32 v14, v{hL}")
    a.e("s_waitcnt lgkmcnt(0)")
    a.e(f"v_mov_b32 v14, {CNT:#x}")
    a.e("v_mov_b32 v12, 1")
    a.e("s_mov_b64 exec, 1")
    a.e("ds_add_u32 v14, v12")
    a.e("s_mov_b64 exec, -1")
    a.lab("L_h_spin")
    a.e("ds_read_b32 v12, v14")
    a.e("s_waitcnt lgkmcnt(0)")
    a.e(f"v_readfirstlane_b32 s{sT0}, v12")
    a.e("s_nop 3")
    a.e(f"s_cmp_lt_u32 s{sT0}, 4")
    a.e("s_cbranch_scc1 L_h_spin")
    a.stamp(5)
    a.e(f"s_lshl_b32 s{sT0}, s{sH}, 11")
    a.e(f"s_add_u32 s{sT0}, s{sT0}, {CAREA:#x}")
    a.e(f"v_add_u32 v14, s{sT0}, v13")
    for x in range(4):
        for k in range(2):
            a.e(f"ds_read_b128 {vr(hX+(x*2+k)*4,4)}, v14 offset:{x*8192+k*1024}")
    a.e(f"v_add_u32 v14, {LAREA:#x}, v15")
    for x in range(4):
        a.e(f"ds_read_b32 v{hK+x}, v14 offset:{x*256}")
    a.e("s_waitcnt lgkmcnt(0)")
    a.e(f"v_add_f32 v13, v{hK}, v{hK+1}")
    a.e(f"v_add_f32 v14, v{hK+2}, v{hK+3}")
    a.e("v_add_f32 v13, v13, v14")
    a.e("v_rcp_f32 v15, v13")
    for k in range(2):
        for i in range(4):
            r0 = hX + k * 4 + i
            a.e(f"v_add_f32 v{r0}, v{r0}, v{r0+8}")
            a.e(f"v_add_f32 v{r0+16}, v{r0+16}, v{r0+24}")
            a.e(f"v_add_f32 v{r0}, v{r0}, v{r0+16}")
            a.e(f"v_mul_f32 v{r0}, v{r0}, v15")
    for k in range(2):
        r0 = hX + k * 4
        a.e(f"v_cvt_pk_bf16_f32 v{hK+8+2*k}, v{r0}, v{r0+1}")
        a.e(f"v_cvt_pk_bf16_f32 v{hK+8+2*k+1}, v{r0+2}, v{r0+3}")
    a.e(f"v_lshlrev_b32 v14, 8, v2")
    a.e(f"v_lshl_add_u32 v14, v3, 3, v14")
    a.e(f"s_lshl_b32 s{sT0}, s{sH}, 6")
    a.e(f"s_add_u32 s{sT0}, s{sT0}, 0x8000")
    a.e(f"v_add_u32 v14, s{sT0}, v14")
    for k in range(2):
        a.e(f"buffer_store_dwordx2 {vr(hK+8+2*k,2)}, v14, s[{sOSRD}:{sOSRD+3}], s{sQOFF} offen offset:{32*k}{stb}")
    a.dump()
    a.lab("L_end")
    a.e("s_endpgm")
    a.l.append('.section .rodata,"a"')
    a.l.append(".p2align 6")
    a.l.append(f".amdhsa_kernel {NAME}_kernel")
    a.l.append("  .amdhsa_next_free_vgpr 256")
    a.l.append("  .amdhsa_next_free_sgpr 80")
    a.l.append("  .amdhsa_accum_offset 256")
    a.l.append("  .amdhsa_group_segment_fixed_size 0")
    a.l.append("  .amdhsa_kernarg_size 48")
    a.l.append("  .amdhsa_user_sgpr_count 2")
    a.l.append("  .amdhsa_user_sgpr_kernarg_segment_ptr 1")
    a.l.append("  .amdhsa_system_sgpr_workgroup_id_x 1")
    a.l.append(".end_amdhsa_kernel")
    return a.text()

if __name__ == "__main__":
    out = sys.argv[1] if len(sys.argv) > 1 else OUT
    for x in sys.argv[2:]:
        if x == "dbg": DBG = True
        elif "=" in x:
            k, v = x.split("="); OPT[k] = v.replace("+", " ").replace("none", "")
        else: FLAGS.add(x)
    open(out, "w").write(gen())
    print("wrote", out)
```

```python
import sys, struct, math

NAME = "standalone__gqa_softmax__near_ridge"
OUT = f"cdna_kernels/{NAME}.s"

def f32bits(x):
    return struct.unpack("<I", struct.pack("<f", x))[0]

CSCALE = (128 ** -0.5) * math.log2(math.e)
LTHRESH = 2.0 ** 40

KRING = 0
VRING = 65536
LAREA = 131072
CNT = LAREA + 1024
SINK = LAREA + 2048
LDS_BYTES = SINK + 4096
CAREA = VRING
QST = VRING + 4 * 8192
Q9ST = KRING + 7 * 8192

DBG = False
FLAGS = set()
OPT = {"kv": "nt", "q": "nt", "st": "", "order": "lock"}

sWAVE = 3
class A:
    def __init__(s):
        s.l = []
    def e(s, t):
        s.l.append("  " + t)
    def lab(s, t):
        s.l.append(t + ":")
    def c(s, t):
        s.l.append("  ; " + t)
    def text(s):
        return "\n".join(s.l) + "\n"
    def pstamp(s, i):
        if DBG and "pst" in FLAGS:
            s.e(f"s_memtime s[{60+2*i}:{61+2*i}]")
            s.e("s_waitcnt lgkmcnt(0)")
    def stamp(s, i):
        if DBG and ("pst" not in FLAGS or i == 1):
            s.e(f"s_memtime s[{60+2*i}:{61+2*i}]")
    def rstamp(s, i):
        if DBG:
            s.e(f"s_memrealtime s[{60+2*i}:{61+2*i}]")
    def dump(s):
        if not DBG: return
        s.e("s_load_dwordx2 s[56:57], s[0:1], 40")
        s.e("s_waitcnt vmcnt(0) lgkmcnt(0)")
        s.e("s_memtime s[72:73]")
        s.e("s_memrealtime s[74:75]")
        s.e("s_waitcnt lgkmcnt(0)")
        s.e(f"s_lshl_b32 s58, s2, 3")
        s.e(f"s_add_u32 s58, s58, s{sWAVE}")
        s.e("s_lshl_b32 s58, s58, 5")
        s.e("v_mov_b32 v250, s58")
        s.e("s_mov_b64 exec, 1")
        s.e("v_mov_b32 v251, s60")
        s.e("global_store_dword v250, v251, s[56:57]")
        for i in range(2, 7):
            s.e(f"s_sub_u32 s59, s{60+2*i}, s62")
            s.e("v_mov_b32 v251, s59")
            s.e(f"global_store_dword v250, v251, s[56:57] offset:{4*(i-1)}")
        s.e("v_mov_b32 v251, s74")
        s.e("global_store_dword v250, v251, s[56:57] offset:28")
        s.e("s_waitcnt vmcnt(0)")

def vr(b, n):
    return f"v[{b}:{b+n-1}]"

vLANE = 1
vKA = [4, 5, 6, 7]; vVA = [8, 9]; vKC = [240, 241, 242, 243]; vVC = [244, 245]
vL = [10, 11]; vQO = 12
vQ = 16; vNEGM = 48; vS = [64, 80]; vP = [96, 104]; vK = 112; vV = 144; vO = 176
vX = 112
vONES = 248; vLA = 252

sQSRD = 8; sKSRD = 12; sVSRD = 16; sOSRD = 20; sDSRD = 24
sG = 32; sMEM = 33; sHEAD = 34; sQOFF = 35; sKVOFF = 36; sC = 37; sLOOP = 38; sKB = 39; sVB = 40
sN = 41; sH = 42; sLDSB = 43; sOFF = 44; sNEXT = 45; sT0 = 46; sT1 = 47; sT2 = 48; sTHR = 49
sK = 50; sT3 = 51; sGB = 52; sSINK = 53; sROT = 54; sBS = 55

class LG:
    def __init__(s):
        s.n = 0; s.done = 0; s.tag = {}; s.inloop = False
    def issue(s, tag):
        s.tag[tag] = s.n; s.n += 1
    def need(s, a, tags):
        m = max(s.tag[t] for t in tags)
        if m < s.done:
            return
        cnt = s.n - 1 - m
        assert cnt <= 15, cnt
        if "nowait" in FLAGS and s.inloop: a.e("s_nop 0")
        else: a.e(f"s_waitcnt lgkmcnt({cnt})")
        s.done = m + 1

def mfma32(a, d, A_, B_, c):
    cs = c if isinstance(c, str) else vr(c, 16)
    a.e(f"v_mfma_f32_32x32x16_bf16 {vr(d,16)}, {vr(A_,4)}, {vr(B_,4)}, {cs}")

def mfma16(a, d, A_, B_, c):
    cs = c if isinstance(c, str) else vr(c, 4)
    a.e(f"v_mfma_f32_16x16x32_bf16 {vr(d,4)}, {vr(A_,4)}, {vr(B_,4)}, {cs}")

def kread(a, lg, s, slotoff, addr=None, dst=None):
    ad = (addr or vKA)[s & 3]
    if not (FLAGS & {"nolds", "nok"}) or not lg.inloop:
        a.e(f"ds_read_b128 {vr((dst or vK)+4*s,4)}, v{ad} offset:{slotoff + (s>>2)*4096}")
    lg.issue(("K", s))

def vread(a, lg, tile, n, slotoff):
    f = n >> 1; jj = n & 1
    ks = f >> 2; t = f & 3
    if not (FLAGS & {"nolds", "nov"}) or not lg.inloop:
        a.e(f"ds_read_b64_tr_b16 {vr(vV+4*f+2*jj,2)}, v{vVA[t&1]} offset:{slotoff + (t>>1)*4096 + ks*2048 + jj*1024}")
    lg.issue(("V", tile, n))

def E(a, buf, e):
    if "noexp" not in FLAGS: a.e(f"v_exp_f32 v{vS[buf]+e}, v{vS[buf]+e}")
def Ad(a, buf, e):
    if "valuadd" in FLAGS: a.e(f"v_add_f32 v{vL[e&1]}, v{vL[e&1]}, v{vS[buf]+e}")
def Cv(a, buf, k): a.e(f"v_cvt_pk_bf16_f32 v{vP[buf]+k}, v{vS[buf]+2*k}, v{vS[buf]+2*k+1}")

def slot(a, lg, par, qk=True, kr=True, vnext=True, bar=True, smn=True, extra=None):
    cur = par; nxt = 1 - par
    extra = extra or {}
    for g in range(16):
        if g < 8:
            if qk and g % 2 == 0:
                lg.need(a, [("K", g), ("K", g + 1)])
        else:
            if g % 2 == 0:
                f = g - 8
                lg.need(a, [("V", cur, 2 * f + 1), ("V", cur, 2 * f + 3)])
        if g < 8:
            if qk:
                mfma32(a, vS[nxt], vK + 4 * g, vQ + 4 * g, vNEGM if g == 0 else vS[nxt])
        else:
            ks = (g - 8) >> 2; t = g & 3
            mfma32(a, vO + 16 * t, vV + 4 * (ks * 4 + t), vP[cur] + 4 * ks, vO + 16 * t)
        if g <= 8:
            vread(a, lg, cur, g + 7, cur * 8192)
        elif vnext:
            vread(a, lg, nxt, g - 9, nxt * 8192)
        if g % 2 == 1 and kr:
            kread(a, lg, (g - 1) // 2, par * 8192)
        if g <= 9:
            e = g + 6
            E(a, cur, e); Ad(a, cur, e - 1)
            if e % 2 == 0: Cv(a, cur, (e - 2) // 2)
        else:
            e = g - 10
            if smn: E(a, nxt, e)
            if e == 0:
                Ad(a, cur, 15); Cv(a, cur, 7)
            elif smn:
                Ad(a, nxt, e - 1)
                if e % 2 == 0: Cv(a, nxt, (e - 2) // 2)
        if "valuadd" not in FLAGS:
            if g == 4: mfma16(a, vLA, vONES, vP[cur], vLA)
            if g == 12: mfma16(a, vLA, vONES, vP[cur] + 4, vLA)
        if g == 0 and bar and "nobar" not in FLAGS:
            a.e("s_barrier")
        for x in extra.get(g, []):
            a.e(x)

def scale_q(a, base, n, t):
    for i in range(0, n, 2):
        r = base + i
        a.e(f"v_lshlrev_b32 v{t[0]}, 16, v{r}")
        a.e(f"v_and_b32 v{t[1]}, 0xffff0000, v{r}")
        a.e(f"v_lshlrev_b32 v{t[2]}, 16, v{r+1}")
        a.e(f"v_and_b32 v{t[3]}, 0xffff0000, v{r+1}")
        for k in range(4):
            a.e(f"v_mul_f32 v{t[k]}, s{sC}, v{t[k]}")
        a.e(f"v_cvt_pk_bf16_f32 v{r}, v{t[0]}, v{t[1]}")
        a.e(f"v_cvt_pk_bf16_f32 v{r+1}, v{t[2]}, v{t[3]}")

def kpat(a, d0, d1, lane, t0, t1):
    a.e(f"v_lshrrev_b32 v{t0}, 4, v{lane}")
    a.e(f"v_and_b32 v{t1}, 7, v{lane}")
    a.e(f"v_xor_b32 v{t0}, v{t0}, v{t1}")
    a.e(f"v_lshlrev_b32 v{t0}, 4, v{t0}")
    a.e(f"v_lshrrev_b32 v{t1}, 3, v{lane}")
    a.e(f"v_lshl_add_u32 v{d0}, v{t1}, 8, v{t0}")
    a.e(f"v_xor_b32 v{d1}, 64, v{d0}")

def gen():
    a = A()
    kvb = (" " + OPT["kv"]) if OPT["kv"] else ""
    qb = (" " + OPT["q"]) if OPT["q"] else ""
    stb = (" " + OPT["st"]) if OPT["st"] else ""
    hdr = open(f"cdna_kernels/{NAME}.s.ref").read().split("; @launch")[0]
    a.l.append(hdr.rstrip("\n"))
    a.l.append(f"; @launch grid=(256,1,1) block=(512,1,1) lds={LDS_BYTES}")
    a.l.append('.amdgcn_target "amdgcn-amd-amdhsa--gfx950"')
    a.l.append(".text")
    a.l.append(f".globl {NAME}_kernel")
    a.l.append(".p2align 8")
    a.l.append(f".type {NAME}_kernel,@function")
    a.lab(f"{NAME}_kernel")
    a.e("s_cmp_ge_u32 s2, 256")
    a.e("s_cbranch_scc1 L_end")
    a.rstamp(0); a.stamp(1)
    a.e("s_load_dwordx4 s[4:7], s[0:1], 0")
    a.e("s_load_dwordx4 s[28:31], s[0:1], 16")
    a.e("v_lshrrev_b32 v1, 6, v0")
    a.e(f"s_and_b32 s{sG}, s2, 7")
    a.e(f"v_readfirstlane_b32 s{sWAVE}, v1")
    a.e(f"v_and_b32 v{vLANE}, 63, v0")
    a.e(f"s_lshr_b32 s{sMEM}, s2, 5")
    a.e(f"s_lshl_b32 s{sMEM}, s{sMEM}, 3")
    a.e(f"s_add_u32 s{sG}, s{sG}, s{sMEM}")
    a.e(f"s_lshr_b32 s{sMEM}, s2, 3")
    a.e(f"s_and_b32 s{sMEM}, s{sMEM}, 3")
    a.e(f"s_lshl_b32 s{sHEAD}, s{sG}, 2")
    a.e(f"s_add_u32 s{sHEAD}, s{sHEAD}, s{sMEM}")
    a.e(f"s_mul_i32 s{sQOFF}, s{sHEAD}, 36864")
    a.e(f"s_lshl_b32 s{sKVOFF}, s{sG}, 18")
    a.e(f"s_mov_b32 s{sC}, {f32bits(CSCALE):#x}")
    a.e(f"s_mov_b32 s{sTHR}, {f32bits(LTHRESH):#x}")
    kpat(a, 14, 15, vLANE, 2, 3)
    a.e("s_waitcnt lgkmcnt(0)")
    a.pstamp(2)
    for srd, p, nb in ((sQSRD, 4, 9437184), (sKSRD, 6, 16777216), (sVSRD, 28, 16777216), (sOSRD, 30, 9437184)):
        a.e(f"s_mov_b32 s{srd}, s{p}")
        a.e(f"s_and_b32 s{srd+1}, s{p+1}, 0xffff")
        a.e(f"s_mov_b32 s{srd+2}, {nb}")
        a.e(f"s_mov_b32 s{srd+3}, 0x20000")
    a.e(f"s_cmp_ge_u32 s{sWAVE}, 4")
    a.e("s_cbranch_scc1 L_helper")

    a.c("---- main wave ----")
    a.e(f"s_lshl_b32 s{sT0}, s{sWAVE}, 13")
    a.e(f"s_add_u32 s{sT1}, s{sT0}, s{sQOFF}")
    a.e(f"s_add_u32 s{sT2}, s{sT0}, {QST:#x}")
    for p in range(8):
        hf = p >> 2; rg = p & 3
        a.e(f"s_add_u32 m0, s{sT2}, {hf*4096 + rg*1024}")
        a.e(f"s_add_u32 s{sT3}, s{sT1}, {rg*2048 + hf*128}")
        a.e(f"buffer_load_dwordx4 v{14 + (rg&1)}, s[{sQSRD}:{sQSRD+3}], s{sT3} offen{qb} lds")
    a.e(f"v_and_b32 v2, 31, v{vLANE}")
    a.e(f"v_lshrrev_b32 v3, 5, v{vLANE}")
    a.e(f"v_lshlrev_b32 v{vQO}, 8, v2")
    a.e(f"v_lshl_add_u32 v{vQO}, v3, 4, v{vQO}")
    a.e(f"v_add_u32 v{vQO}, s{sT0}, v{vQO}")
    a.e("v_bfe_u32 v13, v2, 1, 3")
    a.e("v_xor_b32 v13, v13, v3")
    a.e("v_lshlrev_b32 v13, 4, v13")
    a.e(f"v_lshl_add_u32 v{vKC[0]}, v2, 7, v13")
    for e in range(1, 4):
        a.e(f"v_xor_b32 v{vKC[e]}, {32*e}, v{vKC[0]}")
    a.e(f"v_bfe_u32 v13, v{vLANE}, 2, 2")
    a.e("v_lshl_add_u32 v14, v3, 2, v13")
    a.e("v_lshlrev_b32 v14, 7, v14")
    a.e("v_lshrrev_b32 v13, 1, v13")
    a.e("v_lshl_add_u32 v14, v13, 6, v14")
    a.e(f"v_bfe_u32 v13, v{vLANE}, 4, 1")
    a.e("v_lshl_add_u32 v14, v13, 5, v14")
    a.e(f"v_and_b32 v13, 3, v{vLANE}")
    a.e(f"v_lshl_add_u32 v14, v13, 3, v14")
    a.e(f"v_add_u32 v{vVC[0]}, {VRING:#x}, v14")
    a.e(f"v_xor_b32 v{vVC[1]}, 64, v{vVC[0]}")
    a.e(f"v_mov_b32 v{vVA[0]}, v{vVC[0]}")
    a.e(f"v_mov_b32 v{vVA[1]}, v{vVC[1]}")
    for e in range(4):
        a.e(f"v_add_u32 v{vKA[e]}, s{sT2}, v{vKC[e]}")
    a.e(f"v_mov_b32 v{vL[0]}, 0")
    a.e(f"v_mov_b32 v{vL[1]}, 0")
    a.e(f"v_and_b32 v13, 3, v{vLANE}")
    a.e(f"v_bfe_u32 v14, v{vLANE}, 4, 1")
    a.e("v_cmp_eq_u32 vcc, v13, v14")
    a.e("v_mov_b32 v13, 0x3f803f80")
    a.e("s_nop 1")
    for i in range(4):
        a.e(f"v_cndmask_b32 v{vONES+i}, 0, v13, vcc")
        a.e(f"v_mov_b32 v{vLA+i}, 0")
    for i in range(64):
        a.e(f"v_mov_b32 v{vO+i}, 0")
    a.e(f"s_mov_b32 s{sKB}, 1")
    a.e(f"s_mov_b32 s{sVB}, 0")
    a.e(f"s_mov_b32 s{sLOOP}, {(-15) & 0xffffffff:#x}")
    lg = LG()
    a.pstamp(3)
    a.e("s_waitcnt vmcnt(4)")
    for s in range(4):
        kread(a, lg, s, 0, dst=vQ)
    for s in range(4):
        lg.need(a, [("K", s)])
        scale_q(a, vQ + 4 * s, 4, [13, 14, 15, 2])
    a.e("s_waitcnt vmcnt(0)")
    for s in range(4, 8):
        kread(a, lg, s, 0, dst=vQ)
    a.e("s_waitcnt lgkmcnt(0)")
    lg.done = lg.n
    a.stamp(2)
    a.pstamp(4)
    if DBG: a.e("s_waitcnt lgkmcnt(0)")
    a.e("s_barrier")
    a.pstamp(5)
    for s in range(8):
        kread(a, lg, s, 0, addr=vKC)
    scale_q(a, vQ + 16, 4, [13, 14, 15, 2])
    for s in range(8):
        lg.need(a, [("K", s)])
        mfma32(a, vS[0], vK + 4 * s, vQ + 4 * s, "0" if s == 0 else vS[0])
        if s < 3:
            scale_q(a, vQ + 4 * (s + 5), 4, [13, 14, 15, 2])
            a.e("s_nop 1")
    a.e("s_barrier")
    for s in range(8):
        kread(a, lg, s, 8192, addr=vKC)
    for n in range(7):
        vread(a, lg, 0, n, 0)
    for e in range(4):
        a.e(f"v_add_u32 v{vKA[e]}, 0x4000, v{vKC[e]}")
    S = vS[0]
    a.e(f"v_max3_f32 v13, v{S}, v{S+1}, v{S+2}")
    a.e(f"v_max3_f32 v14, v{S+3}, v{S+4}, v{S+5}")
    a.e(f"v_max3_f32 v13, v13, v{S+6}, v{S+7}")
    a.e(f"v_max3_f32 v14, v14, v{S+8}, v{S+9}")
    a.e(f"v_max3_f32 v13, v13, v{S+10}, v{S+11}")
    a.e(f"v_max3_f32 v14, v14, v{S+12}, v{S+13}")
    a.e(f"v_max3_f32 v13, v13, v{S+14}, v{S+15}")
    a.e("v_max_f32 v13, v13, v14")
    a.e("v_mov_b32 v14, v13")
    a.e("s_nop 1")
    a.e("v_permlane32_swap_b32 v13, v14")
    a.e("v_max_f32 v13, v13, v14")
    for i in range(16):
        a.e(f"v_sub_f32 v{S+i}, v{S+i}, v13")
    for i in range(16):
        a.e(f"v_sub_f32 v{vNEGM+i}, 0, v13")
    for e in range(6):
        E(a, 0, e)
        if e >= 1: Ad(a, 0, e - 1)
        else: a.e("s_nop 0")
        if e >= 2 and e % 2 == 0: Cv(a, 0, (e - 2) // 2)
    a.stamp(3)
    a.e("s_waitcnt lgkmcnt(0)")
    ex0 = {2: [f"v_lshl_add_u32 v{vKA[3]}, s{sKB}, 14, v{vKC[3]}"]}
    ex1 = {2: [f"s_add_u32 s{sLOOP}, s{sLOOP}, 1"],
           6: [f"v_lshl_add_u32 v{vVA[0]}, s{sKB}, 14, v{vVC[0]}"],
           8: [f"v_lshl_add_u32 v{vVA[1]}, s{sKB}, 14, v{vVC[1]}", f"s_add_u32 s{sKB}, s{sKB}, 1"],
           9: [f"s_and_b32 s{sKB}, s{sKB}, 3"],
           10: [f"v_lshl_add_u32 v{vKA[0]}, s{sKB}, 14, v{vKC[0]}"],
           11: [f"v_lshl_add_u32 v{vKA[1]}, s{sKB}, 14, v{vKC[1]}"],
           14: [f"v_lshl_add_u32 v{vKA[2]}, s{sKB}, 14, v{vKC[2]}", f"s_cmp_eq_u32 s{sLOOP}, 0"]}
    dry = A(); lg = LG(); lg.inloop = True
    for s_ in range(8): lg.issue(("K", s_))
    for n in range(7): lg.issue(("V", 0, n))
    lg.done = lg.n
    slot(dry, lg, 0); slot(dry, lg, 1)
    st0 = (lg.n - lg.done)
    a.l.append(".p2align 6")
    a.lab("L_main_loop")
    slot(a, lg, 0, extra=ex0)
    slot(a, lg, 1, extra=ex1)
    assert (lg.n - lg.done) == st0, (lg.n - lg.done, st0)
    a.e("s_cbranch_scc0 L_main_loop")
    slot(a, lg, 0, kr=False)
    slot(a, lg, 1, qk=False, kr=False, vnext=False, bar=False, smn=False)
    a.stamp(4); a.stamp(5)
    if "valuadd" in FLAGS:
        a.e(f"v_add_f32 v13, v{vL[0]}, v{vL[1]}")
        a.e("v_mov_b32 v14, v13")
        a.e("s_nop 1")
        a.e("v_permlane32_swap_b32 v13, v14")
        a.e("v_add_f32 v13, v13, v14")
    else:
        a.e(f"v_and_b32 v14, 16, v{vLANE}")
        a.e("v_cmp_eq_u32 vcc, 0, v14")
        a.e("s_nop 4")
        a.e(f"v_cndmask_b32 v13, v{vLA+1}, v{vLA}, vcc")
    a.e("v_rcp_f32 v15, v13")
    a.e("s_nop 7")
    for t in range(4):
        for k in range(2):
            o = vO + 16 * t + 8 * k
            x = vX + 4 * (2 * t + k)
            for i in range(8):
                a.e(f"v_mul_f32 v{o+i}, v{o+i}, v15")
            for i in range(4):
                a.e(f"v_cvt_pk_bf16_f32 v{x+i}, v{o+2*i}, v{o+2*i+1}")
            a.e("s_nop 1")
            a.e(f"v_permlane32_swap_b32 v{x}, v{x+2}")
            a.e(f"v_permlane32_swap_b32 v{x+1}, v{x+3}")
            a.e(f"buffer_store_dwordx4 {vr(x,4)}, v{vQO}, s[{sOSRD}:{sOSRD+3}], s{sQOFF} offen offset:{64*t+32*k}{stb}")
    a.dump()
    a.e("s_endpgm")

    hD = [4, 5, 243, 244]; hKC = [6, 7]; hVC = [8, 9]; hKA = [11, 12]; hVA = [240, 241]; hL = 10
    hQ = 16; hNEGM = 32; hS = [36, 40]; hP = 44; hK = 48; hV = 80; hO = 112; hX = 144
    a.lab("L_helper")
    a.e("s_setprio 2")
    a.e(f"s_sub_u32 s{sH}, s{sWAVE}, 4")
    a.e(f"s_lshr_b32 s{sT0}, s{sH}, 1")
    a.e(f"s_and_b32 s{sT1}, s{sH}, 1")
    a.e(f"s_lshl_b32 s{sT2}, s{sT1}, 12")
    a.e(f"s_lshl_b32 s{sT3}, s{sT0}, 10")
    a.e(f"s_add_u32 s{sT2}, s{sT2}, s{sT3}")
    a.e(f"s_add_u32 m0, s{sT2}, {Q9ST:#x}")
    a.e(f"s_lshl_b32 s{sT2}, s{sT1}, 7")
    a.e(f"s_lshl_b32 s{sT3}, s{sT0}, 11")
    a.e(f"s_add_u32 s{sT2}, s{sT2}, s{sT3}")
    a.e(f"s_add_u32 s{sT2}, s{sT2}, s{sQOFF}")
    a.e(f"s_add_u32 s{sT2}, s{sT2}, 0x8000")
    a.e(f"s_cmp_eq_u32 s{sT0}, 1")
    a.e(f"s_cselect_b32 s{sT3}, 64, 0")
    a.e(f"v_xor_b32 v13, s{sT3}, v14")
    a.e(f"buffer_load_dwordx4 v13, s[{sQSRD}:{sQSRD+3}], s{sT2} offen{qb} lds")
    a.e(f"s_cselect_b32 s{sDSRD}, s{sVSRD}, s{sKSRD}")
    a.e(f"s_cselect_b32 s{sDSRD+1}, s{sVSRD+1}, s{sKSRD+1}")
    a.e("s_cbranch_scc1 L_h_vpat")
    a.e(f"v_mov_b32 v{hD[0]}, v14")
    a.e(f"v_add_u32 v{hD[1]}, 1024, v15")
    a.e("s_branch L_h_patdone")
    a.lab("L_h_vpat")
    a.e(f"v_bfe_u32 v2, v{vLANE}, 4, 1")
    a.e("v_lshlrev_b32 v2, 2, v2")
    a.e(f"v_and_b32 v3, 7, v{vLANE}")
    a.e("v_xor_b32 v2, v2, v3")
    a.e("v_lshlrev_b32 v2, 4, v2")
    a.e(f"v_lshrrev_b32 v3, 3, v{vLANE}")
    a.e(f"v_lshl_add_u32 v{hD[0]}, v3, 8, v2")
    a.e(f"v_add_u32 v{hD[1]}, 1024, v{hD[0]}")
    a.lab("L_h_patdone")
    a.e(f"v_add_u32 v{hD[2]}, 2048, v{hD[0]}")
    a.e(f"v_add_u32 v{hD[3]}, 2048, v{hD[1]}")
    a.e(f"s_add_u32 s{sDSRD}, s{sDSRD}, s{sKVOFF}")
    a.e(f"s_addc_u32 s{sDSRD+1}, s{sDSRD+1}, 0")
    a.e(f"s_mov_b32 s{sDSRD+2}, 262144")
    a.e(f"s_mov_b32 s{sDSRD+3}, 0x20000")
    a.e(f"s_sub_u32 s{sOFF}, 1, s{sT0}")
    a.e(f"s_lshl_b32 s{sLDSB}, s{sT0}, 16")
    a.e(f"s_lshl_b32 s{sT0}, s{sT1}, 12")
    a.e(f"s_add_u32 s{sLDSB}, s{sLDSB}, s{sT0}")
    a.e(f"s_lshl_b32 s{sGB}, s{sT1}, 7")
    a.e(f"s_mov_b32 s{sNEXT}, 0")
    a.e(f"s_mov_b32 s{sSINK}, {SINK:#x}")

    def issue():
        a.e(f"s_and_b32 s{sT0}, s{sNEXT}, 0xffff")
        a.e(f"s_add_u32 s{sT0}, s{sT0}, s{sLDSB}")
        a.e(f"s_cmp_lt_u32 s{sNEXT}, 0x40000")
        a.e(f"s_cselect_b32 m0, s{sT0}, s{sSINK}")
        if OPT["order"] == "lock":
            a.e(f"s_add_u32 s{sT1}, s{sNEXT}, s{sGB}")
        else:
            msk = {"rot4": 3, "rot8": 7}[OPT["order"]] << 13
            a.e(f"s_add_u32 s{sT1}, s{sNEXT}, s{sROT}")
            a.e(f"s_and_b32 s{sT1}, s{sT1}, {msk:#x}")
            a.e(f"s_andn2_b32 s{sT2}, s{sNEXT}, {msk:#x}")
            a.e(f"s_or_b32 s{sT1}, s{sT1}, s{sT2}")
            a.e(f"s_add_u32 s{sT1}, s{sT1}, s{sGB}")
        for rg in range(4):
            a.e(f"buffer_load_dwordx4 v{hD[rg]}, s[{sDSRD}:{sDSRD+3}], s{sT1} offen offset:{rg*1024}{kvb} lds")
        a.e(f"s_add_u32 s{sNEXT}, s{sNEXT}, 0x2000")

    a.e(f"s_lshl_b32 s{sROT}, s{sMEM}, {14 if OPT['order']=='rot8' else 13}")
    a.e(f"s_lshl_b32 s{sT3}, s{sOFF}, 13")
    a.lab("L_h_init")
    issue()
    a.e(f"s_cmp_le_u32 s{sNEXT}, s{sT3}")
    a.e("s_cbranch_scc1 L_h_init")
    a.e(f"v_and_b32 v2, 15, v{vLANE}")
    a.e(f"v_lshrrev_b32 v3, 4, v{vLANE}")
    a.e("v_lshrrev_b32 v13, 1, v2")
    a.e("v_xor_b32 v13, v13, v3")
    a.e("v_lshlrev_b32 v13, 4, v13")
    a.e(f"v_lshl_add_u32 v{hKC[0]}, v2, 7, v13")
    a.e(f"v_xor_b32 v{hKC[1]}, 64, v{hKC[0]}")
    a.e(f"v_bfe_u32 v13, v{vLANE}, 2, 2")
    a.e("v_lshl_add_u32 v14, v3, 2, v13")
    a.e("v_lshlrev_b32 v14, 7, v14")
    a.e("v_lshrrev_b32 v13, 1, v13")
    a.e("v_lshl_add_u32 v14, v13, 6, v14")
    a.e(f"v_and_b32 v13, 3, v{vLANE}")
    a.e("v_lshl_add_u32 v14, v13, 3, v14")
    a.e(f"v_add_u32 v{hVC[0]}, {VRING:#x}, v14")
    a.e(f"v_xor_b32 v{hVC[1]}, 64, v{hVC[0]}")
    a.e(f"v_mov_b32 v{hL}, 0")
    for i in range(32):
        a.e(f"v_mov_b32 v{hO+i}, 0")
    a.e(f"v_mov_b32 v13, {CNT:#x}")
    a.e("v_mov_b32 v14, 0")
    a.e("ds_write_b32 v13, v14")
    a.e(f"s_lshl_b32 s{sBS}, s{sH}, 13")
    a.stamp(2)

    def h_kreads(addr, off=0, us=(0, 1), dst=hK):
        for u in us:
            for s in range(4):
                a.e(f"ds_read_b128 {vr(dst+(u*4+s)*4,4)}, v{addr[s&1]} offset:{off+(s>>1)*4096+u*2048}")

    a.pstamp(3)
    a.e("s_waitcnt vmcnt(4) lgkmcnt(0)")
    a.pstamp(4)
    a.e("s_barrier")
    issue(); issue()
    a.pstamp(5)
    h_kreads(hKC, off=Q9ST, us=(0,), dst=hQ)
    h_kreads(hKC)
    a.e("s_waitcnt vmcnt(8) lgkmcnt(0)")
    a.e("s_barrier")
    issue(); issue()
    scale_q(a, hQ, 16, [13, 14, 15, 242])
    a.e("s_nop 1")
    for u in range(2):
        for s in range(4):
            mfma16(a, hS[u], hK + (u * 4 + s) * 4, hQ + 4 * s, "0" if s == 0 else hS[u])
    a.e("s_nop 7")
    a.e("s_nop 1")
    a.e(f"v_max3_f32 v13, v{hS[0]}, v{hS[0]+1}, v{hS[0]+2}")
    a.e(f"v_max3_f32 v13, v13, v{hS[0]+3}, v{hS[1]}")
    a.e(f"v_max3_f32 v13, v13, v{hS[1]+1}, v{hS[1]+2}")
    a.e(f"v_max_f32 v13, v13, v{hS[1]+3}")
    a.e("v_mov_b32 v14, v13")
    a.e("s_nop 1")
    a.e("v_permlane32_swap_b32 v13, v14")
    a.e("v_max_f32 v13, v13, v14")
    a.e("v_mov_b32 v14, v13")
    a.e("s_nop 1")
    a.e("v_permlane16_swap_b32 v13, v14")
    a.e("v_max_f32 v13, v13, v14")
    for i in range(4):
        a.e(f"v_sub_f32 v{hNEGM+i}, 0, v13")
    a.stamp(3)
    a.e(f"s_mov_b32 s{sN}, 31")
    cnt = [0]
    ool = []
    def sync():
        cnt[0] += 1
        tag = cnt[0]
        a.e(f"s_sub_u32 s{sN}, s{sN}, 1")
        a.e(f"s_cmp_ge_u32 s{sN}, 29")
        a.e(f"s_cbranch_scc1 L_sk_{tag}")
        a.e("s_waitcnt vmcnt(20) lgkmcnt(0)")
        if "nobar" not in FLAGS: a.e("s_barrier")
        a.lab(f"L_si_{tag}")
        if "nodma" not in FLAGS: issue()
        a.lab(f"L_sd_{tag}")
        ool.append(tag)
    a.e(f"s_mov_b32 s{sK}, s{sH}")
    a.lab("L_h_pre")
    a.e(f"s_sub_u32 s{sK}, s{sK}, 1")
    a.e("s_cbranch_scc1 L_h_go")
    sync()
    a.e("s_branch L_h_pre")
    a.lab("L_h_go")
    a.e(f"s_mov_b32 s{sK}, {(-8) & 0xffffffff:#x}")
    def h_sm(u):
        S_ = hS[u]
        for i in range(4):
            a.e(f"v_exp_f32 v{S_+i}, v{S_+i}")
        a.e("s_nop 0")
        for i in range(4):
            a.e(f"v_add_f32 v{hL}, v{hL}, v{S_+i}")
        a.e(f"v_cvt_pk_bf16_f32 v{hP+2*u}, v{S_}, v{S_+1}")
        a.e(f"v_cvt_pk_bf16_f32 v{hP+2*u+1}, v{S_+2}, v{S_+3}")
    a.l.append(".p2align 6")
    a.lab("L_h_loop")
    nh = "nohelp" in FLAGS
    if not nh:
        for e in range(2):
            a.e(f"v_add_u32 v{hKA[e]}, s{sBS}, v{hKC[e]}")
        for e in range(2):
            a.e(f"v_add_u32 v{hVA[e]}, s{sBS}, v{hVC[e]}")
        a.e(f"s_add_u32 s{sBS}, s{sBS}, 0x8000")
        a.e(f"s_and_b32 s{sBS}, s{sBS}, 0xffff")
        h_kreads(hKA)
        a.e("s_waitcnt lgkmcnt(4)")
        for s in range(4):
            mfma16(a, hS[0], hK + s * 4, hQ + 4 * s, hNEGM if s == 0 else hS[0])
        for t16 in range(4):
            for u in range(2):
                a.e(f"ds_read_b64_tr_b16 {vr(hV+4*t16+2*u,2)}, v{hVA[(t16>>1)&1]} offset:{(t16>>2)*4096+(t16&1)*32+u*2048}")
    sync()
    if not nh:
        for s in range(4):
            mfma16(a, hS[1], hK + (4 + s) * 4, hQ + 4 * s, hNEGM if s == 0 else hS[1])
        for t16 in range(4, 8):
            for u in range(2):
                a.e(f"ds_read_b64_tr_b16 {vr(hV+4*t16+2*u,2)}, v{hVA[(t16>>1)&1]} offset:{(t16>>2)*4096+(t16&1)*32+u*2048}")
        h_sm(0)
    sync()
    if not nh:
        h_sm(1)
        a.e("s_nop 1")
        for t16 in range(4):
            mfma16(a, hO + 4 * t16, hV + 4 * t16, hP, hO + 4 * t16)
    sync()
    if not nh:
        for t16 in range(4, 8):
            mfma16(a, hO + 4 * t16, hV + 4 * t16, hP, hO + 4 * t16)
    sync()
    a.e(f"s_add_u32 s{sK}, s{sK}, 1")
    a.e("s_cbranch_scc0 L_h_loop")
    a.e("s_branch L_h_fin")
    for tag in ool:
        a.lab(f"L_sk_{tag}")
        a.e(f"s_cmp_gt_u32 s{sN}, 30")
        a.e(f"s_cbranch_scc1 L_st_{tag}")
        a.e(f"s_cmp_eq_u32 s{sN}, 29")
        a.e(f"s_cbranch_scc1 L_sr_{tag}")
        a.e("s_waitcnt vmcnt(12)")
        a.lab(f"L_sr_{tag}")
        a.e("s_waitcnt vmcnt(16) lgkmcnt(0)")
        if "nobar" not in FLAGS: a.e("s_barrier")
        issue()
        a.e(f"s_branch L_si_{tag}")
        a.lab(f"L_st_{tag}")
        a.e(f"s_mov_b32 s{sN}, 0")
        a.e("s_waitcnt lgkmcnt(0)")
        a.e("s_nop 7")
        a.e(f"s_branch L_sd_{tag}")
    a.lab("L_h_fin")
    a.stamp(4)
    a.e(f"v_mov_b32 v14, v{hL}")
    a.e("s_nop 1")
    a.e(f"v_permlane32_swap_b32 v{hL}, v14")
    a.e(f"v_add_f32 v{hL}, v{hL}, v14")
    a.e(f"v_mov_b32 v14, v{hL}")
    a.e("s_nop 1")
    a.e(f"v_permlane16_swap_b32 v{hL}, v14")
    a.e(f"v_add_f32 v{hL}, v{hL}, v14")
    a.e(f"s_lshl_b32 s{sT0}, s{sH}, 13")
    a.e(f"s_add_u32 s{sT0}, s{sT0}, {CAREA:#x}")
    a.e(f"v_lshlrev_b32 v13, 4, v{vLANE}")
    a.e(f"v_add_u32 v14, s{sT0}, v13")
    a.e("s_nop 4")
    for t16 in range(8):
        a.e(f"ds_write_b128 v14, {vr(hO+4*t16,4)} offset:{t16*1024}")
    a.e(f"s_lshl_b32 s{sT0}, s{sH}, 8")
    a.e(f"s_add_u32 s{sT0}, s{sT0}, {LAREA:#x}")
    a.e(f"v_lshlrev_b32 v15, 2, v{vLANE}")
    a.e(f"v_add_u32 v14, s{sT0}, v15")
    a.e(f"ds_write_b32 v14, v{hL}")
    a.e("s_waitcnt lgkmcnt(0)")
    a.e(f"v_mov_b32 v14, {CNT:#x}")
    a.e("v_mov_b32 v12, 1")
    a.e("s_mov_b64 exec, 1")
    a.e("ds_add_u32 v14, v12")
    a.e("s_mov_b64 exec, -1")
    a.lab("L_h_spin")
    a.e("ds_read_b32 v12, v14")
    a.e("s_waitcnt lgkmcnt(0)")
    a.e(f"v_readfirstlane_b32 s{sT0}, v12")
    a.e("s_nop 3")
    a.e(f"s_cmp_lt_u32 s{sT0}, 4")
    a.e("s_cbranch_scc1 L_h_spin")
    a.stamp(5)
    a.e(f"s_lshl_b32 s{sT0}, s{sH}, 11")
    a.e(f"s_add_u32 s{sT0}, s{sT0}, {CAREA:#x}")
    a.e(f"v_add_u32 v14, s{sT0}, v13")
    for x in range(4):
        for k in range(2):
            a.e(f"ds_read_b128 {vr(hX+(x*2+k)*4,4)}, v14 offset:{x*8192+k*1024}")
    a.e(f"v_add_u32 v14, {LAREA:#x}, v15")
    for x in range(4):
        a.e(f"ds_read_b32 v{hK+x}, v14 offset:{x*256}")
    a.e("s_waitcnt lgkmcnt(0)")
    a.e(f"v_add_f32 v13, v{hK}, v{hK+1}")
    a.e(f"v_add_f32 v14, v{hK+2}, v{hK+3}")
    a.e("v_add_f32 v13, v13, v14")
    a.e("v_rcp_f32 v15, v13")
    for k in range(2):
        for i in range(4):
            r0 = hX + k * 4 + i
            a.e(f"v_add_f32 v{r0}, v{r0}, v{r0+8}")
            a.e(f"v_add_f32 v{r0+16}, v{r0+16}, v{r0+24}")
            a.e(f"v_add_f32 v{r0}, v{r0}, v{r0+16}")
            a.e(f"v_mul_f32 v{r0}, v{r0}, v15")
    for k in range(2):
        r0 = hX + k * 4
        a.e(f"v_cvt_pk_bf16_f32 v{hK+8+2*k}, v{r0}, v{r0+1}")
        a.e(f"v_cvt_pk_bf16_f32 v{hK+8+2*k+1}, v{r0+2}, v{r0+3}")
    a.e(f"v_lshlrev_b32 v14, 8, v2")
    a.e(f"v_lshl_add_u32 v14, v3, 3, v14")
    a.e(f"s_lshl_b32 s{sT0}, s{sH}, 6")
    a.e(f"s_add_u32 s{sT0}, s{sT0}, 0x8000")
    a.e(f"v_add_u32 v14, s{sT0}, v14")
    for k in range(2):
        a.e(f"buffer_store_dwordx2 {vr(hK+8+2*k,2)}, v14, s[{sOSRD}:{sOSRD+3}], s{sQOFF} offen offset:{32*k}{stb}")
    a.dump()
    a.lab("L_end")
    a.e("s_endpgm")
    a.l.append('.section .rodata,"a"')
    a.l.append(".p2align 6")
    a.l.append(f".amdhsa_kernel {NAME}_kernel")
    a.l.append("  .amdhsa_next_free_vgpr 256")
    a.l.append("  .amdhsa_next_free_sgpr 80")
    a.l.append("  .amdhsa_accum_offset 256")
    a.l.append("  .amdhsa_group_segment_fixed_size 0")
    a.l.append("  .amdhsa_kernarg_size 48")
    a.l.append("  .amdhsa_user_sgpr_count 2")
    a.l.append("  .amdhsa_user_sgpr_kernarg_segment_ptr 1")
    a.l.append("  .amdhsa_system_sgpr_workgroup_id_x 1")
    a.l.append(".end_amdhsa_kernel")
    return a.text()

if __name__ == "__main__":
    out = sys.argv[1] if len(sys.argv) > 1 else OUT
    for x in sys.argv[2:]:
        if x == "dbg": DBG = True
        elif "=" in x:
            k, v = x.split("="); OPT[k] = v.replace("+", " ").replace("none", "")
        else: FLAGS.add(x)
    open(out, "w").write(gen())
    print("wrote", out)
```

```python
import sys, struct, math

NAME = "standalone__gqa_softmax__near_ridge"
OUT = f"cdna_kernels/{NAME}.s"

def f32bits(x):
    return struct.unpack("<I", struct.pack("<f", x))[0]

CSCALE = (128 ** -0.5) * math.log2(math.e)
LTHRESH = 2.0 ** 40

KRING = 0
VRING = 65536
LAREA = 131072
CNT = LAREA + 1024
SINK = LAREA + 2048
LDS_BYTES = SINK + 4096
CAREA = VRING
QST = VRING + 4 * 8192
Q9ST = KRING + 7 * 8192

DBG = False
FLAGS = set()
OPT = {"kv": "nt", "q": "nt", "st": "", "order": "lock"}

sWAVE = 3
class A:
    def __init__(s):
        s.l = []
    def e(s, t):
        s.l.append("  " + t)
    def lab(s, t):
        s.l.append(t + ":")
    def c(s, t):
        s.l.append("  ; " + t)
    def text(s):
        return "\n".join(s.l) + "\n"
    def pstamp(s, i):
        if DBG and "pst" in FLAGS:
            s.e(f"s_memtime s[{60+2*i}:{61+2*i}]")
            s.e("s_waitcnt lgkmcnt(0)")
    def stamp(s, i):
        if DBG and ("pst" not in FLAGS or i == 1):
            s.e(f"s_memtime s[{60+2*i}:{61+2*i}]")
    def rstamp(s, i):
        if DBG:
            s.e(f"s_memrealtime s[{60+2*i}:{61+2*i}]")
    def dump(s):
        if not DBG: return
        s.e("s_load_dwordx2 s[56:57], s[0:1], 40")
        s.e("s_waitcnt vmcnt(0) lgkmcnt(0)")
        s.e("s_memtime s[72:73]")
        s.e("s_memrealtime s[74:75]")
        s.e("s_waitcnt lgkmcnt(0)")
        s.e(f"s_lshl_b32 s58, s2, 3")
        s.e(f"s_add_u32 s58, s58, s{sWAVE}")
        s.e("s_lshl_b32 s58, s58, 5")
        s.e("v_mov_b32 v250, s58")
        s.e("s_mov_b64 exec, 1")
        s.e("v_mov_b32 v251, s60")
        s.e("global_store_dword v250, v251, s[56:57]")
        for i in range(2, 7):
            s.e(f"s_sub_u32 s59, s{60+2*i}, s62")
            s.e("v_mov_b32 v251, s59")
            s.e(f"global_store_dword v250, v251, s[56:57] offset:{4*(i-1)}")
        s.e("v_mov_b32 v251, s74")
        s.e("global_store_dword v250, v251, s[56:57] offset:28")
        s.e("s_waitcnt vmcnt(0)")

def vr(b, n):
    return f"v[{b}:{b+n-1}]"

vLANE = 1
vKA = [4, 5, 6, 7]; vVA = [8, 9]; vKC = [240, 241, 242, 243]; vVC = [244, 245]
vL = [10, 11]; vQO = 12
vQ = 16; vNEGM = 48; vS = [64, 80]; vP = [96, 104]; vK = 112; vV = 144; vO = 176
vX = 112
vONES = 248; vLA = 252

sQSRD = 8; sKSRD = 12; sVSRD = 16; sOSRD = 20; sDSRD = 24
sG = 32; sMEM = 33; sHEAD = 34; sQOFF = 35; sKVOFF = 36; sC = 37; sLOOP = 38; sKB = 39; sVB = 40
sN = 41; sH = 42; sLDSB = 43; sOFF = 44; sNEXT = 45; sT0 = 46; sT1 = 47; sT2 = 48; sTHR = 49
sK = 50; sT3 = 51; sGB = 52; sSINK = 53; sROT = 54; sBS = 55; sROW0 = 58; sPRIV = 59

class LG:
    def __init__(s):
        s.n = 0; s.done = 0; s.tag = {}; s.inloop = False
    def issue(s, tag):
        s.tag[tag] = s.n; s.n += 1
    def need(s, a, tags):
        m = max(s.tag[t] for t in tags)
        if m < s.done:
            return
        cnt = s.n - 1 - m
        assert cnt <= 15, cnt
        if "nowait" in FLAGS and s.inloop: a.e("s_nop 0")
        else: a.e(f"s_waitcnt lgkmcnt({cnt})")
        s.done = m + 1

def mfma32(a, d, A_, B_, c):
    cs = c if isinstance(c, str) else vr(c, 16)
    a.e(f"v_mfma_f32_32x32x16_bf16 {vr(d,16)}, {vr(A_,4)}, {vr(B_,4)}, {cs}")

def mfma16(a, d, A_, B_, c):
    cs = c if isinstance(c, str) else vr(c, 4)
    a.e(f"v_mfma_f32_16x16x32_bf16 {vr(d,4)}, {vr(A_,4)}, {vr(B_,4)}, {cs}")

def kread(a, lg, s, slotoff, addr=None, dst=None):
    ad = (addr or vKA)[s & 3]
    if not (FLAGS & {"nolds", "nok"}) or not lg.inloop:
        a.e(f"ds_read_b128 {vr((dst or vK)+4*s,4)}, v{ad} offset:{slotoff + (s>>2)*4096}")
    lg.issue(("K", s))

def vread(a, lg, tile, n, slotoff):
    f = n >> 1; jj = n & 1
    ks = f >> 2; t = f & 3
    if not (FLAGS & {"nolds", "nov"}) or not lg.inloop:
        a.e(f"ds_read_b64_tr_b16 {vr(vV+4*f+2*jj,2)}, v{vVA[t&1]} offset:{slotoff + (t>>1)*4096 + ks*2048 + jj*1024}")
    lg.issue(("V", tile, n))

def E(a, buf, e):
    if "noexp" not in FLAGS: a.e(f"v_exp_f32 v{vS[buf]+e}, v{vS[buf]+e}")
def Ad(a, buf, e):
    if "valuadd" in FLAGS: a.e(f"v_add_f32 v{vL[e&1]}, v{vL[e&1]}, v{vS[buf]+e}")
def Cv(a, buf, k): a.e(f"v_cvt_pk_bf16_f32 v{vP[buf]+k}, v{vS[buf]+2*k}, v{vS[buf]+2*k+1}")

def slot(a, lg, par, qk=True, kr=True, vnext=True, bar=True, smn=True, extra=None):
    cur = par; nxt = 1 - par
    extra = extra or {}
    for g in range(16):
        if g < 8:
            if qk and g % 2 == 0:
                lg.need(a, [("K", g), ("K", g + 1)])
        else:
            if g % 2 == 0:
                f = g - 8
                lg.need(a, [("V", cur, 2 * f + 1), ("V", cur, 2 * f + 3)])
        if g < 8:
            if qk:
                mfma32(a, vS[nxt], vK + 4 * g, vQ + 4 * g, vNEGM if g == 0 else vS[nxt])
        else:
            ks = (g - 8) >> 2; t = g & 3
            mfma32(a, vO + 16 * t, vV + 4 * (ks * 4 + t), vP[cur] + 4 * ks, vO + 16 * t)
        if g <= 8:
            vread(a, lg, cur, g + 7, cur * 8192)
        elif vnext:
            vread(a, lg, nxt, g - 9, nxt * 8192)
        if g % 2 == 1 and kr:
            kread(a, lg, (g - 1) // 2, par * 8192)
        if g <= 9:
            e = g + 6
            E(a, cur, e); Ad(a, cur, e - 1)
            if e % 2 == 0: Cv(a, cur, (e - 2) // 2)
        else:
            e = g - 10
            if smn: E(a, nxt, e)
            if e == 0:
                Ad(a, cur, 15); Cv(a, cur, 7)
            elif smn:
                Ad(a, nxt, e - 1)
                if e % 2 == 0: Cv(a, nxt, (e - 2) // 2)
        if "valuadd" not in FLAGS:
            if g == 4: mfma16(a, vLA, vONES, vP[cur], vLA)
            if g == 12: mfma16(a, vLA, vONES, vP[cur] + 4, vLA)
        if g == 0 and bar and "nobar" not in FLAGS:
            a.e("s_barrier")
        for x in extra.get(g, []):
            a.e(x)

def scale_q(a, base, n, t):
    for i in range(0, n, 2):
        r = base + i
        a.e(f"v_lshlrev_b32 v{t[0]}, 16, v{r}")
        a.e(f"v_and_b32 v{t[1]}, 0xffff0000, v{r}")
        a.e(f"v_lshlrev_b32 v{t[2]}, 16, v{r+1}")
        a.e(f"v_and_b32 v{t[3]}, 0xffff0000, v{r+1}")
        for k in range(4):
            a.e(f"v_mul_f32 v{t[k]}, s{sC}, v{t[k]}")
        a.e(f"v_cvt_pk_bf16_f32 v{r}, v{t[0]}, v{t[1]}")
        a.e(f"v_cvt_pk_bf16_f32 v{r+1}, v{t[2]}, v{t[3]}")

def store_out(a, stb):
    for t in range(4):
        for k in range(2):
            o = vO + 16 * t + 8 * k
            x = vX + 4 * (2 * t + k)
            for i in range(8):
                a.e(f"v_mul_f32 v{o+i}, v{o+i}, v15")
            for i in range(4):
                a.e(f"v_cvt_pk_bf16_f32 v{x+i}, v{o+2*i}, v{o+2*i+1}")
            a.e("s_nop 1")
            a.e(f"v_permlane32_swap_b32 v{x}, v{x+2}")
            a.e(f"v_permlane32_swap_b32 v{x+1}, v{x+3}")
            a.e(f"buffer_store_dwordx4 {vr(x,4)}, v{vQO}, s[{sOSRD}:{sOSRD+3}], s{sQOFF} offen offset:{64*t+32*k}{stb}")

def kpat(a, d0, d1, lane, t0, t1):
    a.e(f"v_lshrrev_b32 v{t0}, 4, v{lane}")
    a.e(f"v_and_b32 v{t1}, 7, v{lane}")
    a.e(f"v_xor_b32 v{t0}, v{t0}, v{t1}")
    a.e(f"v_lshlrev_b32 v{t0}, 4, v{t0}")
    a.e(f"v_lshrrev_b32 v{t1}, 3, v{lane}")
    a.e(f"v_lshl_add_u32 v{d0}, v{t1}, 8, v{t0}")
    a.e(f"v_xor_b32 v{d1}, 64, v{d0}")

def gen():
    a = A()
    kvb = (" " + OPT["kv"]) if OPT["kv"] else ""
    qb = (" " + OPT["q"]) if OPT["q"] else ""
    stb = (" " + OPT["st"]) if OPT["st"] else ""
    hdr = open(f"cdna_kernels/{NAME}.s.ref").read().split("; @launch")[0]
    a.l.append(hdr.rstrip("\n"))
    a.l.append(f"; @launch grid=(256,1,1) block=(512,1,1) lds={LDS_BYTES}")
    a.l.append('.amdgcn_target "amdgcn-amd-amdhsa--gfx950"')
    a.l.append(".text")
    a.l.append(f".globl {NAME}_kernel")
    a.l.append(".p2align 8")
    a.l.append(f".type {NAME}_kernel,@function")
    a.lab(f"{NAME}_kernel")
    a.e("s_cmp_ge_u32 s2, 256")
    a.e("s_cbranch_scc1 L_end")
    a.rstamp(0); a.stamp(1)
    a.e("s_load_dwordx4 s[4:7], s[0:1], 0")
    a.e("s_load_dwordx4 s[28:31], s[0:1], 16")
    a.e("v_lshrrev_b32 v1, 6, v0")
    a.e(f"s_and_b32 s{sG}, s2, 7")
    a.e(f"v_readfirstlane_b32 s{sWAVE}, v1")
    a.e(f"v_and_b32 v{vLANE}, 63, v0")
    a.e(f"s_lshr_b32 s{sMEM}, s2, 5")
    a.e(f"s_lshl_b32 s{sMEM}, s{sMEM}, 3")
    a.e(f"s_add_u32 s{sG}, s{sG}, s{sMEM}")
    a.e(f"s_lshr_b32 s{sMEM}, s2, 3")
    a.e(f"s_and_b32 s{sMEM}, s{sMEM}, 3")
    a.e(f"s_lshl_b32 s{sHEAD}, s{sG}, 2")
    a.e(f"s_add_u32 s{sHEAD}, s{sHEAD}, s{sMEM}")
    a.e(f"s_mul_i32 s{sQOFF}, s{sHEAD}, 36864")
    a.e(f"s_lshl_b32 s{sKVOFF}, s{sG}, 18")
    a.e(f"s_mov_b32 s{sC}, {f32bits(CSCALE):#x}")
    a.e(f"s_mov_b32 s{sTHR}, {f32bits(LTHRESH):#x}")
    kpat(a, 14, 15, vLANE, 2, 3)
    a.e("s_waitcnt lgkmcnt(0)")
    a.pstamp(2)
    for srd, p, nb in ((sQSRD, 4, 9437184), (sKSRD, 6, 16777216), (sVSRD, 28, 16777216), (sOSRD, 30, 9437184)):
        a.e(f"s_mov_b32 s{srd}, s{p}")
        a.e(f"s_and_b32 s{srd+1}, s{p+1}, 0xffff")
        a.e(f"s_mov_b32 s{srd+2}, {nb}")
        a.e(f"s_mov_b32 s{srd+3}, 0x20000")
    a.e(f"s_cmp_ge_u32 s{sWAVE}, 4")
    a.e("s_cbranch_scc1 L_helper")

    a.c("---- main wave ----")
    a.e(f"s_lshl_b32 s{sT0}, s{sWAVE}, 13")
    a.e(f"s_add_u32 s{sT1}, s{sT0}, s{sQOFF}")
    a.e(f"s_add_u32 s{sT2}, s{sT0}, {QST:#x}")
    for p in range(8):
        hf = p >> 2; rg = p & 3
        a.e(f"s_add_u32 m0, s{sT2}, {hf*4096 + rg*1024}")
        a.e(f"s_add_u32 s{sT3}, s{sT1}, {rg*2048 + hf*128}")
        a.e(f"buffer_load_dwordx4 v{14 + (rg&1)}, s[{sQSRD}:{sQSRD+3}], s{sT3} offen{qb} lds")
    a.e(f"v_and_b32 v2, 31, v{vLANE}")
    a.e(f"v_lshrrev_b32 v3, 5, v{vLANE}")
    a.e(f"v_lshlrev_b32 v{vQO}, 8, v2")
    a.e(f"v_lshl_add_u32 v{vQO}, v3, 4, v{vQO}")
    a.e(f"v_add_u32 v{vQO}, s{sT0}, v{vQO}")
    a.e("v_bfe_u32 v13, v2, 1, 3")
    a.e("v_xor_b32 v13, v13, v3")
    a.e("v_lshlrev_b32 v13, 4, v13")
    a.e(f"v_lshl_add_u32 v{vKC[0]}, v2, 7, v13")
    for e in range(1, 4):
        a.e(f"v_xor_b32 v{vKC[e]}, {32*e}, v{vKC[0]}")
    a.e(f"v_bfe_u32 v13, v{vLANE}, 2, 2")
    a.e("v_lshl_add_u32 v14, v3, 2, v13")
    a.e("v_lshlrev_b32 v14, 7, v14")
    a.e("v_lshrrev_b32 v13, 1, v13")
    a.e("v_lshl_add_u32 v14, v13, 6, v14")
    a.e(f"v_bfe_u32 v13, v{vLANE}, 4, 1")
    a.e("v_lshl_add_u32 v14, v13, 5, v14")
    a.e(f"v_and_b32 v13, 3, v{vLANE}")
    a.e(f"v_lshl_add_u32 v14, v13, 3, v14")
    a.e(f"v_add_u32 v{vVC[0]}, {VRING:#x}, v14")
    a.e(f"v_xor_b32 v{vVC[1]}, 64, v{vVC[0]}")
    a.e(f"v_mov_b32 v{vVA[0]}, v{vVC[0]}")
    a.e(f"v_mov_b32 v{vVA[1]}, v{vVC[1]}")
    for e in range(4):
        a.e(f"v_add_u32 v{vKA[e]}, s{sT2}, v{vKC[e]}")
    a.e(f"v_mov_b32 v{vL[0]}, 0")
    a.e(f"v_mov_b32 v{vL[1]}, 0")
    a.e(f"v_and_b32 v13, 3, v{vLANE}")
    a.e(f"v_bfe_u32 v14, v{vLANE}, 4, 1")
    a.e("v_cmp_eq_u32 vcc, v13, v14")
    a.e("v_mov_b32 v13, 0x3f803f80")
    a.e("s_nop 1")
    for i in range(4):
        a.e(f"v_cndmask_b32 v{vONES+i}, 0, v13, vcc")
        a.e(f"v_mov_b32 v{vLA+i}, 0")
    for i in range(64):
        a.e(f"v_mov_b32 v{vO+i}, 0")
    a.e(f"s_mov_b32 s{sKB}, 1")
    a.e(f"s_mov_b32 s{sVB}, 0")
    a.e(f"s_mov_b32 s{sLOOP}, {(-15) & 0xffffffff:#x}")
    lg = LG()
    a.pstamp(3)
    a.e("s_waitcnt vmcnt(4)")
    for s in range(4):
        kread(a, lg, s, 0, dst=vQ)
    for s in range(4):
        lg.need(a, [("K", s)])
        scale_q(a, vQ + 4 * s, 4, [13, 14, 15, 2])
    a.e("s_waitcnt vmcnt(0)")
    for s in range(4, 8):
        kread(a, lg, s, 0, dst=vQ)
    a.e("s_waitcnt lgkmcnt(0)")
    lg.done = lg.n
    a.stamp(2)
    a.pstamp(4)
    if DBG: a.e("s_waitcnt lgkmcnt(0)")
    a.e("s_barrier")
    a.pstamp(5)
    for s in range(8):
        kread(a, lg, s, 0, addr=vKC)
    scale_q(a, vQ + 16, 4, [13, 14, 15, 2])
    for s in range(8):
        lg.need(a, [("K", s)])
        mfma32(a, vS[0], vK + 4 * s, vQ + 4 * s, "0" if s == 0 else vS[0])
        if s < 3:
            scale_q(a, vQ + 4 * (s + 5), 4, [13, 14, 15, 2])
            a.e("s_nop 1")
    a.e("s_barrier")
    for s in range(8):
        kread(a, lg, s, 8192, addr=vKC)
    for n in range(7):
        vread(a, lg, 0, n, 0)
    for e in range(4):
        a.e(f"v_add_u32 v{vKA[e]}, 0x4000, v{vKC[e]}")
    S = vS[0]
    a.e(f"v_max3_f32 v13, v{S}, v{S+1}, v{S+2}")
    a.e(f"v_max3_f32 v14, v{S+3}, v{S+4}, v{S+5}")
    a.e(f"v_max3_f32 v13, v13, v{S+6}, v{S+7}")
    a.e(f"v_max3_f32 v14, v14, v{S+8}, v{S+9}")
    a.e(f"v_max3_f32 v13, v13, v{S+10}, v{S+11}")
    a.e(f"v_max3_f32 v14, v14, v{S+12}, v{S+13}")
    a.e(f"v_max3_f32 v13, v13, v{S+14}, v{S+15}")
    a.e("v_max_f32 v13, v13, v14")
    a.e("v_mov_b32 v14, v13")
    a.e("s_nop 1")
    a.e("v_permlane32_swap_b32 v13, v14")
    a.e("v_max_f32 v13, v13, v14")
    for i in range(16):
        a.e(f"v_sub_f32 v{S+i}, v{S+i}, v13")
    for i in range(16):
        a.e(f"v_sub_f32 v{vNEGM+i}, 0, v13")
    for e in range(6):
        E(a, 0, e)
        if e >= 1: Ad(a, 0, e - 1)
        else: a.e("s_nop 0")
        if e >= 2 and e % 2 == 0: Cv(a, 0, (e - 2) // 2)
    a.stamp(3)
    a.e("s_waitcnt lgkmcnt(0)")
    ex0 = {2: [f"v_lshl_add_u32 v{vKA[3]}, s{sKB}, 14, v{vKC[3]}"]}
    ex1 = {2: [f"s_add_u32 s{sLOOP}, s{sLOOP}, 1"],
           6: [f"v_lshl_add_u32 v{vVA[0]}, s{sKB}, 14, v{vVC[0]}"],
           8: [f"v_lshl_add_u32 v{vVA[1]}, s{sKB}, 14, v{vVC[1]}", f"s_add_u32 s{sKB}, s{sKB}, 1"],
           9: [f"s_and_b32 s{sKB}, s{sKB}, 3"],
           10: [f"v_lshl_add_u32 v{vKA[0]}, s{sKB}, 14, v{vKC[0]}"],
           11: [f"v_lshl_add_u32 v{vKA[1]}, s{sKB}, 14, v{vKC[1]}"],
           14: [f"v_lshl_add_u32 v{vKA[2]}, s{sKB}, 14, v{vKC[2]}", f"s_cmp_eq_u32 s{sLOOP}, 0"]}
    dry = A(); lg = LG(); lg.inloop = True
    for s_ in range(8): lg.issue(("K", s_))
    for n in range(7): lg.issue(("V", 0, n))
    lg.done = lg.n
    slot(dry, lg, 0); slot(dry, lg, 1)
    st0 = (lg.n - lg.done)
    a.l.append(".p2align 6")
    a.lab("L_main_loop")
    slot(a, lg, 0, extra=ex0)
    slot(a, lg, 1, extra=ex1)
    assert (lg.n - lg.done) == st0, (lg.n - lg.done, st0)
    a.e("s_cbranch_scc0 L_main_loop")
    slot(a, lg, 0, kr=False)
    slot(a, lg, 1, qk=False, kr=False, vnext=False, bar=False, smn=False)
    a.stamp(4); a.stamp(5)
    if "valuadd" in FLAGS:
        a.e(f"v_add_f32 v13, v{vL[0]}, v{vL[1]}")
        a.e("v_mov_b32 v14, v13")
        a.e("s_nop 1")
        a.e("v_permlane32_swap_b32 v13, v14")
        a.e("v_add_f32 v13, v13, v14")
    else:
        a.e(f"v_and_b32 v14, 16, v{vLANE}")
        a.e("v_cmp_eq_u32 vcc, 0, v14")
        a.e("s_nop 4")
        a.e(f"v_cndmask_b32 v13, v{vLA+1}, v{vLA}, vcc")
    a.e(f"v_cmp_nlt_f32 vcc, v13, s{sTHR}")
    a.e("v_rcp_f32 v15, v13")
    a.e(f"s_lshl_b32 s{sROW0}, s{sWAVE}, 5")
    a.e(f"s_lshl_b32 s{sPRIV}, s{sWAVE}, 13")
    a.e("s_mov_b64 s[56:57], -1")
    a.e("s_cbranch_vccnz L_slow")
    a.e("s_nop 3")
    store_out(a, stb)
    a.dump()
    a.e("s_endpgm")

    hD = [4, 5, 243, 244]; hKC = [6, 7]; hVC = [8, 9]; hKA = [11, 12]; hVA = [240, 241]; hL = 10
    hQ = 16; hNEGM = 32; hS = [36, 40]; hP = 44; hK = 48; hV = 80; hO = 112; hX = 144
    a.lab("L_helper")
    a.e("s_setprio 2")
    a.e(f"s_sub_u32 s{sH}, s{sWAVE}, 4")
    a.e(f"s_lshr_b32 s{sT0}, s{sH}, 1")
    a.e(f"s_and_b32 s{sT1}, s{sH}, 1")
    a.e(f"s_lshl_b32 s{sT2}, s{sT1}, 12")
    a.e(f"s_lshl_b32 s{sT3}, s{sT0}, 10")
    a.e(f"s_add_u32 s{sT2}, s{sT2}, s{sT3}")
    a.e(f"s_add_u32 m0, s{sT2}, {Q9ST:#x}")
    a.e(f"s_lshl_b32 s{sT2}, s{sT1}, 7")
    a.e(f"s_lshl_b32 s{sT3}, s{sT0}, 11")
    a.e(f"s_add_u32 s{sT2}, s{sT2}, s{sT3}")
    a.e(f"s_add_u32 s{sT2}, s{sT2}, s{sQOFF}")
    a.e(f"s_add_u32 s{sT2}, s{sT2}, 0x8000")
    a.e(f"s_cmp_eq_u32 s{sT0}, 1")
    a.e(f"s_cselect_b32 s{sT3}, 64, 0")
    a.e(f"v_xor_b32 v13, s{sT3}, v14")
    a.e(f"buffer_load_dwordx4 v13, s[{sQSRD}:{sQSRD+3}], s{sT2} offen{qb} lds")
    a.e(f"s_cselect_b32 s{sDSRD}, s{sVSRD}, s{sKSRD}")
    a.e(f"s_cselect_b32 s{sDSRD+1}, s{sVSRD+1}, s{sKSRD+1}")
    a.e("s_cbranch_scc1 L_h_vpat")
    a.e(f"v_mov_b32 v{hD[0]}, v14")
    a.e(f"v_add_u32 v{hD[1]}, 1024, v15")
    a.e("s_branch L_h_patdone")
    a.lab("L_h_vpat")
    a.e(f"v_bfe_u32 v2, v{vLANE}, 4, 1")
    a.e("v_lshlrev_b32 v2, 2, v2")
    a.e(f"v_and_b32 v3, 7, v{vLANE}")
    a.e("v_xor_b32 v2, v2, v3")
    a.e("v_lshlrev_b32 v2, 4, v2")
    a.e(f"v_lshrrev_b32 v3, 3, v{vLANE}")
    a.e(f"v_lshl_add_u32 v{hD[0]}, v3, 8, v2")
    a.e(f"v_add_u32 v{hD[1]}, 1024, v{hD[0]}")
    a.lab("L_h_patdone")
    a.e(f"v_add_u32 v{hD[2]}, 2048, v{hD[0]}")
    a.e(f"v_add_u32 v{hD[3]}, 2048, v{hD[1]}")
    a.e(f"s_add_u32 s{sDSRD}, s{sDSRD}, s{sKVOFF}")
    a.e(f"s_addc_u32 s{sDSRD+1}, s{sDSRD+1}, 0")
    a.e(f"s_mov_b32 s{sDSRD+2}, 262144")
    a.e(f"s_mov_b32 s{sDSRD+3}, 0x20000")
    a.e(f"s_sub_u32 s{sOFF}, 1, s{sT0}")
    a.e(f"s_lshl_b32 s{sLDSB}, s{sT0}, 16")
    a.e(f"s_lshl_b32 s{sT0}, s{sT1}, 12")
    a.e(f"s_add_u32 s{sLDSB}, s{sLDSB}, s{sT0}")
    a.e(f"s_lshl_b32 s{sGB}, s{sT1}, 7")
    a.e(f"s_mov_b32 s{sNEXT}, 0")
    a.e(f"s_mov_b32 s{sSINK}, {SINK:#x}")

    def issue():
        a.e(f"s_and_b32 s{sT0}, s{sNEXT}, 0xffff")
        a.e(f"s_add_u32 s{sT0}, s{sT0}, s{sLDSB}")
        a.e(f"s_cmp_lt_u32 s{sNEXT}, 0x40000")
        a.e(f"s_cselect_b32 m0, s{sT0}, s{sSINK}")
        if OPT["order"] == "lock":
            a.e(f"s_add_u32 s{sT1}, s{sNEXT}, s{sGB}")
        else:
            msk = {"rot4": 3, "rot8": 7}[OPT["order"]] << 13
            a.e(f"s_add_u32 s{sT1}, s{sNEXT}, s{sROT}")
            a.e(f"s_and_b32 s{sT1}, s{sT1}, {msk:#x}")
            a.e(f"s_andn2_b32 s{sT2}, s{sNEXT}, {msk:#x}")
            a.e(f"s_or_b32 s{sT1}, s{sT1}, s{sT2}")
            a.e(f"s_add_u32 s{sT1}, s{sT1}, s{sGB}")
        for rg in range(4):
            a.e(f"buffer_load_dwordx4 v{hD[rg]}, s[{sDSRD}:{sDSRD+3}], s{sT1} offen offset:{rg*1024}{kvb} lds")
        a.e(f"s_add_u32 s{sNEXT}, s{sNEXT}, 0x2000")

    a.e(f"s_lshl_b32 s{sROT}, s{sMEM}, {14 if OPT['order']=='rot8' else 13}")
    a.e(f"s_lshl_b32 s{sT3}, s{sOFF}, 13")
    a.lab("L_h_init")
    issue()
    a.e(f"s_cmp_le_u32 s{sNEXT}, s{sT3}")
    a.e("s_cbranch_scc1 L_h_init")
    a.e(f"v_and_b32 v2, 15, v{vLANE}")
    a.e(f"v_lshrrev_b32 v3, 4, v{vLANE}")
    a.e("v_lshrrev_b32 v13, 1, v2")
    a.e("v_xor_b32 v13, v13, v3")
    a.e("v_lshlrev_b32 v13, 4, v13")
    a.e(f"v_lshl_add_u32 v{hKC[0]}, v2, 7, v13")
    a.e(f"v_xor_b32 v{hKC[1]}, 64, v{hKC[0]}")
    a.e(f"v_bfe_u32 v13, v{vLANE}, 2, 2")
    a.e("v_lshl_add_u32 v14, v3, 2, v13")
    a.e("v_lshlrev_b32 v14, 7, v14")
    a.e("v_lshrrev_b32 v13, 1, v13")
    a.e("v_lshl_add_u32 v14, v13, 6, v14")
    a.e(f"v_and_b32 v13, 3, v{vLANE}")
    a.e("v_lshl_add_u32 v14, v13, 3, v14")
    a.e(f"v_add_u32 v{hVC[0]}, {VRING:#x}, v14")
    a.e(f"v_xor_b32 v{hVC[1]}, 64, v{hVC[0]}")
    a.e(f"v_mov_b32 v{hL}, 0")
    for i in range(32):
        a.e(f"v_mov_b32 v{hO+i}, 0")
    a.e(f"v_mov_b32 v13, {CNT:#x}")
    a.e("v_mov_b32 v14, 0")
    a.e("ds_write_b32 v13, v14")
    a.e(f"s_lshl_b32 s{sBS}, s{sH}, 13")
    a.stamp(2)

    def h_kreads(addr, off=0, us=(0, 1), dst=hK):
        for u in us:
            for s in range(4):
                a.e(f"ds_read_b128 {vr(dst+(u*4+s)*4,4)}, v{addr[s&1]} offset:{off+(s>>1)*4096+u*2048}")

    a.pstamp(3)
    a.e("s_waitcnt vmcnt(4) lgkmcnt(0)")
    a.pstamp(4)
    a.e("s_barrier")
    issue(); issue()
    a.pstamp(5)
    h_kreads(hKC, off=Q9ST, us=(0,), dst=hQ)
    h_kreads(hKC)
    a.e("s_waitcnt vmcnt(8) lgkmcnt(0)")
    a.e("s_barrier")
    issue(); issue()
    scale_q(a, hQ, 16, [13, 14, 15, 242])
    a.e("s_nop 1")
    for u in range(2):
        for s in range(4):
            mfma16(a, hS[u], hK + (u * 4 + s) * 4, hQ + 4 * s, "0" if s == 0 else hS[u])
    a.e("s_nop 7")
    a.e("s_nop 1")
    a.e(f"v_max3_f32 v13, v{hS[0]}, v{hS[0]+1}, v{hS[0]+2}")
    a.e(f"v_max3_f32 v13, v13, v{hS[0]+3}, v{hS[1]}")
    a.e(f"v_max3_f32 v13, v13, v{hS[1]+1}, v{hS[1]+2}")
    a.e(f"v_max_f32 v13, v13, v{hS[1]+3}")
    a.e("v_mov_b32 v14, v13")
    a.e("s_nop 1")
    a.e("v_permlane32_swap_b32 v13, v14")
    a.e("v_max_f32 v13, v13, v14")
    a.e("v_mov_b32 v14, v13")
    a.e("s_nop 1")
    a.e("v_permlane16_swap_b32 v13, v14")
    a.e("v_max_f32 v13, v13, v14")
    for i in range(4):
        a.e(f"v_sub_f32 v{hNEGM+i}, 0, v13")
    a.stamp(3)
    a.e(f"s_mov_b32 s{sN}, 31")
    cnt = [0]
    ool = []
    def sync():
        cnt[0] += 1
        tag = cnt[0]
        a.e(f"s_sub_u32 s{sN}, s{sN}, 1")
        a.e(f"s_cmp_ge_u32 s{sN}, 29")
        a.e(f"s_cbranch_scc1 L_sk_{tag}")
        a.e("s_waitcnt vmcnt(20) lgkmcnt(0)")
        if "nobar" not in FLAGS: a.e("s_barrier")
        a.lab(f"L_si_{tag}")
        if "nodma" not in FLAGS: issue()
        a.lab(f"L_sd_{tag}")
        ool.append(tag)
    a.e(f"s_mov_b32 s{sK}, s{sH}")
    a.lab("L_h_pre")
    a.e(f"s_sub_u32 s{sK}, s{sK}, 1")
    a.e("s_cbranch_scc1 L_h_go")
    sync()
    a.e("s_branch L_h_pre")
    a.lab("L_h_go")
    a.e(f"s_mov_b32 s{sK}, {(-8) & 0xffffffff:#x}")
    def h_sm(u):
        S_ = hS[u]
        for i in range(4):
            a.e(f"v_exp_f32 v{S_+i}, v{S_+i}")
        a.e("s_nop 0")
        for i in range(4):
            a.e(f"v_add_f32 v{hL}, v{hL}, v{S_+i}")
        a.e(f"v_cvt_pk_bf16_f32 v{hP+2*u}, v{S_}, v{S_+1}")
        a.e(f"v_cvt_pk_bf16_f32 v{hP+2*u+1}, v{S_+2}, v{S_+3}")
    a.l.append(".p2align 6")
    a.lab("L_h_loop")
    nh = "nohelp" in FLAGS
    if not nh:
        for e in range(2):
            a.e(f"v_add_u32 v{hKA[e]}, s{sBS}, v{hKC[e]}")
        for e in range(2):
            a.e(f"v_add_u32 v{hVA[e]}, s{sBS}, v{hVC[e]}")
        a.e(f"s_add_u32 s{sBS}, s{sBS}, 0x8000")
        a.e(f"s_and_b32 s{sBS}, s{sBS}, 0xffff")
        h_kreads(hKA)
        a.e("s_waitcnt lgkmcnt(4)")
        for s in range(4):
            mfma16(a, hS[0], hK + s * 4, hQ + 4 * s, hNEGM if s == 0 else hS[0])
        for t16 in range(4):
            for u in range(2):
                a.e(f"ds_read_b64_tr_b16 {vr(hV+4*t16+2*u,2)}, v{hVA[(t16>>1)&1]} offset:{(t16>>2)*4096+(t16&1)*32+u*2048}")
    sync()
    if not nh:
        for s in range(4):
            mfma16(a, hS[1], hK + (4 + s) * 4, hQ + 4 * s, hNEGM if s == 0 else hS[1])
        for t16 in range(4, 8):
            for u in range(2):
                a.e(f"ds_read_b64_tr_b16 {vr(hV+4*t16+2*u,2)}, v{hVA[(t16>>1)&1]} offset:{(t16>>2)*4096+(t16&1)*32+u*2048}")
        h_sm(0)
    sync()
    if not nh:
        h_sm(1)
        a.e("s_nop 1")
        for t16 in range(4):
            mfma16(a, hO + 4 * t16, hV + 4 * t16, hP, hO + 4 * t16)
    sync()
    if not nh:
        for t16 in range(4, 8):
            mfma16(a, hO + 4 * t16, hV + 4 * t16, hP, hO + 4 * t16)
    sync()
    a.e(f"s_add_u32 s{sK}, s{sK}, 1")
    a.e("s_cbranch_scc0 L_h_loop")
    a.e("s_branch L_h_fin")
    for tag in ool:
        a.lab(f"L_sk_{tag}")
        a.e(f"s_cmp_gt_u32 s{sN}, 30")
        a.e(f"s_cbranch_scc1 L_st_{tag}")
        a.e(f"s_cmp_eq_u32 s{sN}, 29")
        a.e(f"s_cbranch_scc1 L_sr_{tag}")
        a.e("s_waitcnt vmcnt(12)")
        a.lab(f"L_sr_{tag}")
        a.e("s_waitcnt vmcnt(16) lgkmcnt(0)")
        if "nobar" not in FLAGS: a.e("s_barrier")
        issue()
        a.e(f"s_branch L_si_{tag}")
        a.lab(f"L_st_{tag}")
        a.e(f"s_mov_b32 s{sN}, 0")
        a.e("s_waitcnt lgkmcnt(0)")
        a.e("s_nop 7")
        a.e(f"s_branch L_sd_{tag}")
    a.lab("L_h_fin")
    a.stamp(4)
    a.e(f"v_mov_b32 v14, v{hL}")
    a.e("s_nop 1")
    a.e(f"v_permlane32_swap_b32 v{hL}, v14")
    a.e(f"v_add_f32 v{hL}, v{hL}, v14")
    a.e(f"v_mov_b32 v14, v{hL}")
    a.e("s_nop 1")
    a.e(f"v_permlane16_swap_b32 v{hL}, v14")
    a.e(f"v_add_f32 v{hL}, v{hL}, v14")
    a.e(f"s_lshl_b32 s{sT0}, s{sH}, 13")
    a.e(f"s_add_u32 s{sT0}, s{sT0}, {CAREA:#x}")
    a.e(f"v_lshlrev_b32 v13, 4, v{vLANE}")
    a.e(f"v_add_u32 v14, s{sT0}, v13")
    a.e("s_nop 4")
    for t16 in range(8):
        a.e(f"ds_write_b128 v14, {vr(hO+4*t16,4)} offset:{t16*1024}")
    a.e(f"s_lshl_b32 s{sT0}, s{sH}, 8")
    a.e(f"s_add_u32 s{sT0}, s{sT0}, {LAREA:#x}")
    a.e(f"v_lshlrev_b32 v15, 2, v{vLANE}")
    a.e(f"v_add_u32 v14, s{sT0}, v15")
    a.e(f"ds_write_b32 v14, v{hL}")
    a.e("s_waitcnt lgkmcnt(0)")
    a.e(f"v_mov_b32 v14, {CNT:#x}")
    a.e("v_mov_b32 v12, 1")
    a.e("s_mov_b64 exec, 1")
    a.e("ds_add_u32 v14, v12")
    a.e("s_mov_b64 exec, -1")
    a.lab("L_h_spin")
    a.e("ds_read_b32 v12, v14")
    a.e("s_waitcnt lgkmcnt(0)")
    a.e(f"v_readfirstlane_b32 s{sT0}, v12")
    a.e("s_nop 3")
    a.e(f"s_cmp_lt_u32 s{sT0}, 4")
    a.e("s_cbranch_scc1 L_h_spin")
    a.stamp(5)
    a.e(f"s_lshl_b32 s{sT0}, s{sH}, 11")
    a.e(f"s_add_u32 s{sT0}, s{sT0}, {CAREA:#x}")
    a.e(f"v_add_u32 v14, s{sT0}, v13")
    for x in range(4):
        for k in range(2):
            a.e(f"ds_read_b128 {vr(hX+(x*2+k)*4,4)}, v14 offset:{x*8192+k*1024}")
    a.e(f"v_add_u32 v14, {LAREA:#x}, v15")
    for x in range(4):
        a.e(f"ds_read_b32 v{hK+x}, v14 offset:{x*256}")
    a.e("s_waitcnt lgkmcnt(0)")
    a.e(f"v_add_f32 v13, v{hK}, v{hK+1}")
    a.e(f"v_add_f32 v14, v{hK+2}, v{hK+3}")
    a.e("v_add_f32 v13, v13, v14")
    a.e(f"v_cmp_nlt_f32 vcc, v13, s{sTHR}")
    a.e("v_rcp_f32 v15, v13")
    a.e("s_nop 3")
    a.e("s_cbranch_vccnz L_h_bad")
    for k in range(2):
        for i in range(4):
            r0 = hX + k * 4 + i
            a.e(f"v_add_f32 v{r0}, v{r0}, v{r0+8}")
            a.e(f"v_add_f32 v{r0+16}, v{r0+16}, v{r0+24}")
            a.e(f"v_add_f32 v{r0}, v{r0}, v{r0+16}")
            a.e(f"v_mul_f32 v{r0}, v{r0}, v15")
    for k in range(2):
        r0 = hX + k * 4
        a.e(f"v_cvt_pk_bf16_f32 v{hK+8+2*k}, v{r0}, v{r0+1}")
        a.e(f"v_cvt_pk_bf16_f32 v{hK+8+2*k+1}, v{r0+2}, v{r0+3}")
    a.e(f"v_lshlrev_b32 v14, 8, v2")
    a.e(f"v_lshl_add_u32 v14, v3, 3, v14")
    a.e(f"s_lshl_b32 s{sT0}, s{sH}, 6")
    a.e(f"s_add_u32 s{sT0}, s{sT0}, 0x8000")
    a.e(f"v_add_u32 v14, s{sT0}, v14")
    for k in range(2):
        a.e(f"buffer_store_dwordx2 {vr(hK+8+2*k,2)}, v14, s[{sOSRD}:{sOSRD+3}], s{sQOFF} offen offset:{32*k}{stb}")
    a.dump()
    a.lab("L_end")
    a.e("s_endpgm")
    a.lab("L_h_bad")
    a.e(f"s_cmp_lg_u32 s{sH}, 0")
    a.e("s_cbranch_scc1 L_end")
    a.e(f"s_mov_b32 s{sROW0}, 128")
    a.e(f"s_mov_b32 s{sPRIV}, {4*8192}")
    a.e("s_mov_b32 s56, 0x0000ffff")
    a.e("s_mov_b32 s57, 0x0000ffff")
    a.lab("L_slow")
    a.e("s_waitcnt vmcnt(0) lgkmcnt(0)")
    a.e("s_nop 7")
    a.e("s_nop 7")
    a.e(f"v_and_b32 v2, 31, v{vLANE}")
    a.e(f"v_lshrrev_b32 v3, 5, v{vLANE}")
    a.e(f"v_lshlrev_b32 v4, 8, v2")
    a.e(f"v_lshl_add_u32 v4, v3, 4, v4")
    a.e(f"s_lshl_b32 s{sT0}, s{sROW0}, 8")
    a.e(f"v_add_u32 v{vQO}, s{sT0}, v4")
    for s in range(8):
        a.e(f"buffer_load_dwordx4 {vr(vQ+4*s,4)}, v{vQO}, s[{sQSRD}:{sQSRD+3}], s{sQOFF} offen offset:{32*s}")
    a.e(f"v_bfe_u32 v13, v{vLANE}, 4, 1")
    a.e("v_lshlrev_b32 v13, 2, v13")
    a.e(f"v_and_b32 v14, 7, v{vLANE}")
    a.e("v_xor_b32 v13, v13, v14")
    a.e("v_lshlrev_b32 v13, 4, v13")
    a.e(f"v_lshrrev_b32 v14, 3, v{vLANE}")
    a.e("v_lshl_add_u32 v5, v14, 8, v13")
    a.e(f"v_bfe_u32 v13, v{vLANE}, 2, 2")
    a.e("v_lshl_add_u32 v14, v3, 2, v13")
    a.e("v_lshlrev_b32 v14, 7, v14")
    a.e("v_lshrrev_b32 v13, 1, v13")
    a.e("v_lshl_add_u32 v14, v13, 6, v14")
    a.e(f"v_bfe_u32 v13, v{vLANE}, 4, 1")
    a.e("v_lshl_add_u32 v14, v13, 5, v14")
    a.e(f"v_and_b32 v13, 3, v{vLANE}")
    a.e("v_lshl_add_u32 v14, v13, 3, v14")
    a.e(f"v_add_u32 v{vVA[0]}, s{sPRIV}, v14")
    a.e(f"v_xor_b32 v{vVA[1]}, 64, v{vVA[0]}")
    a.e("s_waitcnt vmcnt(0)")
    scale_q(a, vQ, 32, [13, 14, 15, 2])
    a.e("v_mov_b32 v6, 0xff800000")
    a.e(f"s_mov_b32 s{sT1}, s{sKVOFF}")
    a.e(f"s_mov_b32 s{sN}, 0")
    def sl_qk(c0):
        for s in range(8):
            a.e(f"buffer_load_dwordx4 {vr(vK+4*s,4)}, v4, s[{sKSRD}:{sKSRD+3}], s{sT1} offen offset:{32*s}")
        a.e("s_waitcnt vmcnt(0)")
        for s in range(8):
            mfma32(a, vS[0], vK + 4 * s, vQ + 4 * s, c0 if s == 0 else vS[0])
        a.e("s_nop 7")
        a.e("s_nop 7")
    a.lab("L_slow_p1")
    sl_qk("0")
    for i in range(0, 16, 2):
        a.e(f"v_max3_f32 v6, v6, v{vS[0]+i}, v{vS[0]+i+1}")
    a.e(f"s_add_u32 s{sT1}, s{sT1}, 0x2000")
    a.e(f"s_add_u32 s{sN}, s{sN}, 1")
    a.e(f"s_cmp_lt_u32 s{sN}, 32")
    a.e("s_cbranch_scc1 L_slow_p1")
    a.e("v_mov_b32 v14, v6")
    a.e("s_nop 1")
    a.e("v_permlane32_swap_b32 v6, v14")
    a.e("v_max_f32 v6, v6, v14")
    for i in range(16):
        a.e(f"v_sub_f32 v{vNEGM+i}, 0, v6")
    for i in range(64):
        a.e(f"v_mov_b32 v{vO+i}, 0")
    a.e(f"v_mov_b32 v{vL[0]}, 0")
    a.e(f"s_mov_b32 s{sT1}, s{sKVOFF}")
    a.e(f"s_mov_b32 s{sN}, 0")
    a.lab("L_slow_p2")
    for p in range(8):
        hf = p >> 2; rg = p & 3
        a.e(f"s_add_u32 m0, s{sPRIV}, {hf*4096 + rg*1024}")
        a.e(f"s_add_u32 s{sT2}, s{sT1}, {rg*2048 + hf*128}")
        a.e(f"buffer_load_dwordx4 v5, s[{sVSRD}:{sVSRD+3}], s{sT2} offen lds")
    sl_qk(vNEGM)
    lg2 = LG()
    for n in range(16):
        vread(a, lg2, 0, n, 0)
        if n == 7: a.e("s_waitcnt lgkmcnt(0)")
    for e in range(16):
        a.e(f"v_exp_f32 v{vS[0]+e}, v{vS[0]+e}")
    a.e("s_nop 0")
    for e in range(16):
        a.e(f"v_add_f32 v{vL[0]}, v{vL[0]}, v{vS[0]+e}")
    for k in range(8):
        Cv(a, 0, k)
    a.e("s_waitcnt lgkmcnt(0)")
    a.e("s_nop 1")
    for ks in range(2):
        for t in range(4):
            mfma32(a, vO + 16 * t, vV + 4 * (ks * 4 + t), vP[0] + 4 * ks, vO + 16 * t)
    a.e(f"s_add_u32 s{sT1}, s{sT1}, 0x2000")
    a.e(f"s_add_u32 s{sN}, s{sN}, 1")
    a.e(f"s_cmp_lt_u32 s{sN}, 32")
    a.e("s_cbranch_scc1 L_slow_p2")
    a.e(f"v_mov_b32 v14, v{vL[0]}")
    a.e("s_nop 1")
    a.e(f"v_permlane32_swap_b32 v{vL[0]}, v14")
    a.e(f"v_add_f32 v13, v{vL[0]}, v14")
    a.e("v_rcp_f32 v15, v13")
    a.e("s_nop 7")
    a.e("s_nop 7")
    for t in range(4):
        for k in range(2):
            o = vO + 16 * t + 8 * k
            x = vX + 4 * (2 * t + k)
            for i in range(8):
                a.e(f"v_mul_f32 v{o+i}, v{o+i}, v15")
            for i in range(4):
                a.e(f"v_cvt_pk_bf16_f32 v{x+i}, v{o+2*i}, v{o+2*i+1}")
            a.e("s_nop 1")
            a.e(f"v_permlane32_swap_b32 v{x}, v{x+2}")
            a.e(f"v_permlane32_swap_b32 v{x+1}, v{x+3}")
    a.e("s_mov_b64 exec, s[56:57]")
    for t in range(4):
        for k in range(2):
            x = vX + 4 * (2 * t + k)
            a.e(f"buffer_store_dwordx4 {vr(x,4)}, v{vQO}, s[{sOSRD}:{sOSRD+3}], s{sQOFF} offen offset:{64*t+32*k}")
    a.e("s_endpgm")
    a.l.append('.section .rodata,"a"')
    a.l.append(".p2align 6")
    a.l.append(f".amdhsa_kernel {NAME}_kernel")
    a.l.append("  .amdhsa_next_free_vgpr 256")
    a.l.append("  .amdhsa_next_free_sgpr 80")
    a.l.append("  .amdhsa_accum_offset 256")
    a.l.append("  .amdhsa_group_segment_fixed_size 0")
    a.l.append("  .amdhsa_kernarg_size 48")
    a.l.append("  .amdhsa_user_sgpr_count 2")
    a.l.append("  .amdhsa_user_sgpr_kernarg_segment_ptr 1")
    a.l.append("  .amdhsa_system_sgpr_workgroup_id_x 1")
    a.l.append(".end_amdhsa_kernel")
    return a.text()

if __name__ == "__main__":
    out = sys.argv[1] if len(sys.argv) > 1 else OUT
    for x in sys.argv[2:]:
        if x == "dbg": DBG = True
        elif "=" in x:
            k, v = x.split("="); OPT[k] = v.replace("+", " ").replace("none", "")
        else: FLAGS.add(x)
    open(out, "w").write(gen())
    print("wrote", out)
```

```python
import sys, struct, math

NAME = "standalone__gqa_softmax__near_ridge"
OUT = f"cdna_kernels/{NAME}.s"

def f32bits(x):
    return struct.unpack("<I", struct.pack("<f", x))[0]

CSCALE = (128 ** -0.5) * math.log2(math.e)
LTHRESH = 2.0 ** 40

KRING = 0
VRING = 65536
LAREA = 131072
CNT = LAREA + 1024
SINK = LAREA + 2048
LDS_BYTES = SINK + 4096
CAREA = VRING
QST = VRING + 4 * 8192
Q9ST = KRING + 7 * 8192

DBG = False
FLAGS = set()
OPT = {"kv": "nt", "q": "nt", "st": "", "order": "lock"}

sWAVE = 3
class A:
    def __init__(s):
        s.l = []
    def e(s, t):
        s.l.append("  " + t)
    def lab(s, t):
        s.l.append(t + ":")
    def c(s, t):
        s.l.append("  ; " + t)
    def text(s):
        return "\n".join(s.l) + "\n"
    def pstamp(s, i):
        if DBG and "pst" in FLAGS:
            s.e(f"s_memtime s[{60+2*i}:{61+2*i}]")
            s.e("s_waitcnt lgkmcnt(0)")
    def stamp(s, i):
        if DBG and ("pst" not in FLAGS or i == 1):
            s.e(f"s_memtime s[{60+2*i}:{61+2*i}]")
    def rstamp(s, i):
        if DBG:
            s.e(f"s_memrealtime s[{60+2*i}:{61+2*i}]")
    def dump(s):
        if not DBG: return
        s.e("s_load_dwordx2 s[56:57], s[0:1], 40")
        s.e("s_waitcnt vmcnt(0) lgkmcnt(0)")
        s.e("s_memtime s[72:73]")
        s.e("s_memrealtime s[74:75]")
        s.e("s_waitcnt lgkmcnt(0)")
        s.e(f"s_lshl_b32 s58, s2, 3")
        s.e(f"s_add_u32 s58, s58, s{sWAVE}")
        s.e("s_lshl_b32 s58, s58, 5")
        s.e("v_mov_b32 v250, s58")
        s.e("s_mov_b64 exec, 1")
        s.e("v_mov_b32 v251, s60")
        s.e("global_store_dword v250, v251, s[56:57]")
        for i in range(2, 7):
            s.e(f"s_sub_u32 s59, s{60+2*i}, s62")
            s.e("v_mov_b32 v251, s59")
            s.e(f"global_store_dword v250, v251, s[56:57] offset:{4*(i-1)}")
        s.e("v_mov_b32 v251, s74")
        s.e("global_store_dword v250, v251, s[56:57] offset:28")
        s.e("s_waitcnt vmcnt(0)")

def vr(b, n):
    return f"v[{b}:{b+n-1}]"

vLANE = 1
vKA = [4, 5, 6, 7]; vVA = [8, 9]; vKC = [240, 241, 242, 243]; vVC = [244, 245]
vL = [10, 11]; vQO = 12
vQ = 16; vNEGM = 48; vS = [64, 80]; vP = [96, 104]; vK = 112; vV = 144; vO = 176
vX = 112
vONES = 248; vLA = 252

sQSRD = 8; sKSRD = 12; sVSRD = 16; sOSRD = 20; sDSRD = 24
sG = 32; sMEM = 33; sHEAD = 34; sQOFF = 35; sKVOFF = 36; sC = 37; sLOOP = 38; sKB = 39; sVB = 40
sN = 41; sH = 42; sLDSB = 43; sOFF = 44; sNEXT = 45; sT0 = 46; sT1 = 47; sT2 = 48; sTHR = 49
sK = 50; sT3 = 51; sGB = 52; sSINK = 53; sROT = 54; sBS = 55; sROW0 = 58; sPRIV = 59

class LG:
    def __init__(s):
        s.n = 0; s.done = 0; s.tag = {}; s.inloop = False
    def issue(s, tag):
        s.tag[tag] = s.n; s.n += 1
    def need(s, a, tags):
        m = max(s.tag[t] for t in tags)
        if m < s.done:
            return
        cnt = s.n - 1 - m
        assert cnt <= 15, cnt
        if "nowait" in FLAGS and s.inloop: a.e("s_nop 0")
        else: a.e(f"s_waitcnt lgkmcnt({cnt})")
        s.done = m + 1

def mfma32(a, d, A_, B_, c):
    cs = c if isinstance(c, str) else vr(c, 16)
    a.e(f"v_mfma_f32_32x32x16_bf16 {vr(d,16)}, {vr(A_,4)}, {vr(B_,4)}, {cs}")

def mfma16(a, d, A_, B_, c):
    cs = c if isinstance(c, str) else vr(c, 4)
    a.e(f"v_mfma_f32_16x16x32_bf16 {vr(d,4)}, {vr(A_,4)}, {vr(B_,4)}, {cs}")

def kread(a, lg, s, slotoff, addr=None, dst=None):
    ad = (addr or vKA)[s & 3]
    if not (FLAGS & {"nolds", "nok"}) or not lg.inloop:
        a.e(f"ds_read_b128 {vr((dst or vK)+4*s,4)}, v{ad} offset:{slotoff + (s>>2)*4096}")
    lg.issue(("K", s))

def vread(a, lg, tile, n, slotoff):
    f = n >> 1; jj = n & 1
    ks = f >> 2; t = f & 3
    if not (FLAGS & {"nolds", "nov"}) or not lg.inloop:
        a.e(f"ds_read_b64_tr_b16 {vr(vV+4*f+2*jj,2)}, v{vVA[t&1]} offset:{slotoff + (t>>1)*4096 + ks*2048 + jj*1024}")
    lg.issue(("V", tile, n))

def E(a, buf, e):
    if "noexp" not in FLAGS: a.e(f"v_exp_f32 v{vS[buf]+e}, v{vS[buf]+e}")
def Ad(a, buf, e):
    if "valuadd" in FLAGS: a.e(f"v_add_f32 v{vL[e&1]}, v{vL[e&1]}, v{vS[buf]+e}")
def Cv(a, buf, k): a.e(f"v_cvt_pk_bf16_f32 v{vP[buf]+k}, v{vS[buf]+2*k}, v{vS[buf]+2*k+1}")

def slot(a, lg, par, qk=True, kr=True, vnext=True, bar=True, smn=True, extra=None):
    cur = par; nxt = 1 - par
    extra = extra or {}
    for g in range(16):
        if g < 8:
            if qk and g % 2 == 0:
                lg.need(a, [("K", g), ("K", g + 1)])
        else:
            if g % 2 == 0:
                f = g - 8
                lg.need(a, [("V", cur, 2 * f + 1), ("V", cur, 2 * f + 3)])
        if g < 8:
            if qk:
                mfma32(a, vS[nxt], vK + 4 * g, vQ + 4 * g, vNEGM if g == 0 else vS[nxt])
        else:
            ks = (g - 8) >> 2; t = g & 3
            mfma32(a, vO + 16 * t, vV + 4 * (ks * 4 + t), vP[cur] + 4 * ks, vO + 16 * t)
        if g <= 8:
            vread(a, lg, cur, g + 7, cur * 8192)
        elif vnext:
            vread(a, lg, nxt, g - 9, nxt * 8192)
        if g % 2 == 1 and kr:
            kread(a, lg, (g - 1) // 2, par * 8192)
        if g <= 9:
            e = g + 6
            E(a, cur, e); Ad(a, cur, e - 1)
            if e % 2 == 0: Cv(a, cur, (e - 2) // 2)
        else:
            e = g - 10
            if smn: E(a, nxt, e)
            if e == 0:
                Ad(a, cur, 15); Cv(a, cur, 7)
            elif smn:
                Ad(a, nxt, e - 1)
                if e % 2 == 0: Cv(a, nxt, (e - 2) // 2)
        if "valuadd" not in FLAGS:
            if g == 4: mfma16(a, vLA, vONES, vP[cur], vLA)
            if g == 12: mfma16(a, vLA, vONES, vP[cur] + 4, vLA)
        if g == 0 and bar and "nobar" not in FLAGS:
            a.e("s_barrier")
        for x in extra.get(g, []):
            a.e(x)

def scale_q(a, base, n, t):
    for i in range(0, n, 2):
        r = base + i
        a.e(f"v_lshlrev_b32 v{t[0]}, 16, v{r}")
        a.e(f"v_and_b32 v{t[1]}, 0xffff0000, v{r}")
        a.e(f"v_lshlrev_b32 v{t[2]}, 16, v{r+1}")
        a.e(f"v_and_b32 v{t[3]}, 0xffff0000, v{r+1}")
        for k in range(4):
            a.e(f"v_mul_f32 v{t[k]}, s{sC}, v{t[k]}")
        a.e(f"v_cvt_pk_bf16_f32 v{r}, v{t[0]}, v{t[1]}")
        a.e(f"v_cvt_pk_bf16_f32 v{r+1}, v{t[2]}, v{t[3]}")

def store_out(a, stb):
    for t in range(4):
        for k in range(2):
            o = vO + 16 * t + 8 * k
            x = vX + 4 * (2 * t + k)
            for i in range(8):
                a.e(f"v_mul_f32 v{o+i}, v{o+i}, v15")
            for i in range(4):
                a.e(f"v_cvt_pk_bf16_f32 v{x+i}, v{o+2*i}, v{o+2*i+1}")
            a.e("s_nop 1")
            a.e(f"v_permlane32_swap_b32 v{x}, v{x+2}")
            a.e(f"v_permlane32_swap_b32 v{x+1}, v{x+3}")
            a.e(f"buffer_store_dwordx4 {vr(x,4)}, v{vQO}, s[{sOSRD}:{sOSRD+3}], s{sQOFF} offen offset:{64*t+32*k}{stb}")

def store_out_lds(a, stb):
    a.e(f"v_and_b32 v2, 31, v{vLANE}")
    a.e(f"v_lshrrev_b32 v3, 5, v{vLANE}")
    a.e(f"v_and_b32 v13, 15, v{vLANE}")
    a.e("v_xor_b32 v3, v3, v13")
    a.e("v_lshlrev_b32 v3, 4, v3")
    a.e("v_lshl_add_u32 v3, v2, 8, v3")
    a.e(f"v_add_u32 v3, s{sPRIV}, v3")
    a.e(f"v_lshrrev_b32 v2, 4, v{vLANE}")
    a.e("v_xor_b32 v13, v13, v2")
    a.e("v_lshlrev_b32 v13, 4, v13")
    a.e("v_lshl_add_u32 v13, v2, 8, v13")
    a.e(f"v_add_u32 v4, s{sPRIV}, v13")
    for j in range(1, 4):
        a.e(f"v_xor_b32 v{4+j}, {64*j}, v4")
    a.e(f"v_lshlrev_b32 v8, 4, v{vLANE}")
    a.e(f"s_lshl_b32 s{sT0}, s{sWAVE}, 13")
    a.e(f"s_add_u32 s{sT0}, s{sT0}, s{sQOFF}")
    a.e(f"s_add_u32 s{sT1}, s{sT0}, 4096")
    for t in range(4):
        for k in range(2):
            o = vO + 16 * t + 8 * k
            x = vX + 4 * (2 * t + k)
            for i in range(8):
                a.e(f"v_mul_f32 v{o+i}, v{o+i}, v15")
            for i in range(4):
                a.e(f"v_cvt_pk_bf16_f32 v{x+i}, v{o+2*i}, v{o+2*i+1}")
            a.e(f"v_xor_b32 v14, {(4*t+2*k)*16}, v3")
            a.e("s_nop 0")
            a.e(f"v_permlane32_swap_b32 v{x}, v{x+2}")
            a.e(f"v_permlane32_swap_b32 v{x+1}, v{x+3}")
            a.e(f"ds_write_b128 v14, {vr(x,4)}")
    a.e("s_waitcnt lgkmcnt(0)")
    for j in range(8):
        a.e(f"ds_read_b128 {vr(vV+4*j,4)}, v{4+(j&3)} offset:{j*1024}")
    for j in range(8):
        a.e(f"s_waitcnt lgkmcnt({7-j})")
        a.e(f"buffer_store_dwordx4 {vr(vV+4*j,4)}, v8, s[{sOSRD}:{sOSRD+3}], s{sT0 if j < 4 else sT1} offen offset:{(j&3)*1024}{stb}")

def kpat(a, d0, d1, lane, t0, t1):
    a.e(f"v_lshrrev_b32 v{t0}, 4, v{lane}")
    a.e(f"v_and_b32 v{t1}, 7, v{lane}")
    a.e(f"v_xor_b32 v{t0}, v{t0}, v{t1}")
    a.e(f"v_lshlrev_b32 v{t0}, 4, v{t0}")
    a.e(f"v_lshrrev_b32 v{t1}, 3, v{lane}")
    a.e(f"v_lshl_add_u32 v{d0}, v{t1}, 8, v{t0}")
    a.e(f"v_xor_b32 v{d1}, 64, v{d0}")

def gen():
    a = A()
    kvb = (" " + OPT["kv"]) if OPT["kv"] else ""
    qb = (" " + OPT["q"]) if OPT["q"] else ""
    stb = (" " + OPT["st"]) if OPT["st"] else ""
    hdr = open(f"cdna_kernels/{NAME}.s.ref").read().split("; @launch")[0]
    a.l.append(hdr.rstrip("\n"))
    a.l.append(f"; @launch grid=(256,1,1) block=(512,1,1) lds={LDS_BYTES}")
    a.l.append('.amdgcn_target "amdgcn-amd-amdhsa--gfx950"')
    a.l.append(".text")
    a.l.append(f".globl {NAME}_kernel")
    a.l.append(".p2align 8")
    a.l.append(f".type {NAME}_kernel,@function")
    a.lab(f"{NAME}_kernel")
    a.e("s_cmp_ge_u32 s2, 256")
    a.e("s_cbranch_scc1 L_end")
    a.rstamp(0); a.stamp(1)
    a.e("s_load_dwordx4 s[4:7], s[0:1], 0")
    a.e("s_load_dwordx4 s[28:31], s[0:1], 16")
    a.e("v_lshrrev_b32 v1, 6, v0")
    a.e(f"s_and_b32 s{sG}, s2, 7")
    a.e(f"v_readfirstlane_b32 s{sWAVE}, v1")
    a.e(f"v_and_b32 v{vLANE}, 63, v0")
    a.e(f"s_lshr_b32 s{sMEM}, s2, 5")
    a.e(f"s_lshl_b32 s{sMEM}, s{sMEM}, 3")
    a.e(f"s_add_u32 s{sG}, s{sG}, s{sMEM}")
    a.e(f"s_lshr_b32 s{sMEM}, s2, 3")
    a.e(f"s_and_b32 s{sMEM}, s{sMEM}, 3")
    a.e(f"s_lshl_b32 s{sHEAD}, s{sG}, 2")
    a.e(f"s_add_u32 s{sHEAD}, s{sHEAD}, s{sMEM}")
    a.e(f"s_mul_i32 s{sQOFF}, s{sHEAD}, 36864")
    a.e(f"s_lshl_b32 s{sKVOFF}, s{sG}, 18")
    a.e(f"s_mov_b32 s{sC}, {f32bits(CSCALE):#x}")
    a.e(f"s_mov_b32 s{sTHR}, {f32bits(LTHRESH):#x}")
    kpat(a, 14, 15, vLANE, 2, 3)
    a.e("s_waitcnt lgkmcnt(0)")
    a.pstamp(2)
    for srd, p, nb in ((sQSRD, 4, 9437184), (sKSRD, 6, 16777216), (sVSRD, 28, 16777216), (sOSRD, 30, 9437184)):
        a.e(f"s_mov_b32 s{srd}, s{p}")
        a.e(f"s_and_b32 s{srd+1}, s{p+1}, 0xffff")
        a.e(f"s_mov_b32 s{srd+2}, {nb}")
        a.e(f"s_mov_b32 s{srd+3}, 0x20000")
    a.e(f"s_cmp_ge_u32 s{sWAVE}, 4")
    a.e("s_cbranch_scc1 L_helper")

    a.c("---- main wave ----")
    a.e(f"s_lshl_b32 s{sT0}, s{sWAVE}, 13")
    a.e(f"s_add_u32 s{sT1}, s{sT0}, s{sQOFF}")
    a.e(f"s_add_u32 s{sT2}, s{sT0}, {QST:#x}")
    for p in range(8):
        hf = p >> 2; rg = p & 3
        a.e(f"s_add_u32 m0, s{sT2}, {hf*4096 + rg*1024}")
        a.e(f"s_add_u32 s{sT3}, s{sT1}, {rg*2048 + hf*128}")
        a.e(f"buffer_load_dwordx4 v{14 + (rg&1)}, s[{sQSRD}:{sQSRD+3}], s{sT3} offen{qb} lds")
    a.e(f"v_and_b32 v2, 31, v{vLANE}")
    a.e(f"v_lshrrev_b32 v3, 5, v{vLANE}")
    a.e(f"v_lshlrev_b32 v{vQO}, 8, v2")
    a.e(f"v_lshl_add_u32 v{vQO}, v3, 4, v{vQO}")
    a.e(f"v_add_u32 v{vQO}, s{sT0}, v{vQO}")
    a.e("v_bfe_u32 v13, v2, 1, 3")
    a.e("v_xor_b32 v13, v13, v3")
    a.e("v_lshlrev_b32 v13, 4, v13")
    a.e(f"v_lshl_add_u32 v{vKC[0]}, v2, 7, v13")
    for e in range(1, 4):
        a.e(f"v_xor_b32 v{vKC[e]}, {32*e}, v{vKC[0]}")
    a.e(f"v_bfe_u32 v13, v{vLANE}, 2, 2")
    a.e("v_lshl_add_u32 v14, v3, 2, v13")
    a.e("v_lshlrev_b32 v14, 7, v14")
    a.e("v_lshrrev_b32 v13, 1, v13")
    a.e("v_lshl_add_u32 v14, v13, 6, v14")
    a.e(f"v_bfe_u32 v13, v{vLANE}, 4, 1")
    a.e("v_xor_b32 v13, v13, v3")
    a.e("v_lshl_add_u32 v14, v13, 5, v14")
    a.e(f"v_and_b32 v13, 3, v{vLANE}")
    a.e(f"v_lshl_add_u32 v14, v13, 3, v14")
    a.e(f"v_add_u32 v{vVC[0]}, {VRING:#x}, v14")
    a.e(f"v_xor_b32 v{vVC[1]}, 64, v{vVC[0]}")
    a.e(f"v_mov_b32 v{vVA[0]}, v{vVC[0]}")
    a.e(f"v_mov_b32 v{vVA[1]}, v{vVC[1]}")
    for e in range(4):
        a.e(f"v_add_u32 v{vKA[e]}, s{sT2}, v{vKC[e]}")
    a.e(f"v_mov_b32 v{vL[0]}, 0")
    a.e(f"v_mov_b32 v{vL[1]}, 0")
    a.e(f"v_and_b32 v13, 3, v{vLANE}")
    a.e(f"v_bfe_u32 v14, v{vLANE}, 4, 1")
    a.e("v_cmp_eq_u32 vcc, v13, v14")
    a.e("v_mov_b32 v13, 0x3f803f80")
    a.e("s_nop 1")
    for i in range(4):
        a.e(f"v_cndmask_b32 v{vONES+i}, 0, v13, vcc")
        a.e(f"v_mov_b32 v{vLA+i}, 0")
    for i in range(64):
        a.e(f"v_mov_b32 v{vO+i}, 0")
    a.e(f"s_mov_b32 s{sKB}, 1")
    a.e(f"s_mov_b32 s{sVB}, 0")
    a.e(f"s_mov_b32 s{sLOOP}, {(-15) & 0xffffffff:#x}")
    lg = LG()
    a.pstamp(3)
    a.e("s_waitcnt vmcnt(4)")
    for s in range(4):
        kread(a, lg, s, 0, dst=vQ)
    for s in range(4):
        lg.need(a, [("K", s)])
        scale_q(a, vQ + 4 * s, 4, [13, 14, 15, 2])
    a.e("s_waitcnt vmcnt(0)")
    for s in range(4, 8):
        kread(a, lg, s, 0, dst=vQ)
    a.e("s_waitcnt lgkmcnt(0)")
    lg.done = lg.n
    a.stamp(2)
    a.pstamp(4)
    if DBG: a.e("s_waitcnt lgkmcnt(0)")
    a.e("s_barrier")
    a.pstamp(5)
    for s in range(8):
        kread(a, lg, s, 0, addr=vKC)
    scale_q(a, vQ + 16, 4, [13, 14, 15, 2])
    for s in range(8):
        lg.need(a, [("K", s)])
        mfma32(a, vS[0], vK + 4 * s, vQ + 4 * s, "0" if s == 0 else vS[0])
        if s < 3:
            scale_q(a, vQ + 4 * (s + 5), 4, [13, 14, 15, 2])
            a.e("s_nop 1")
    a.e("s_barrier")
    for s in range(8):
        kread(a, lg, s, 8192, addr=vKC)
    for n in range(7):
        vread(a, lg, 0, n, 0)
    for e in range(4):
        a.e(f"v_add_u32 v{vKA[e]}, 0x4000, v{vKC[e]}")
    S = vS[0]
    a.e(f"v_max3_f32 v13, v{S}, v{S+1}, v{S+2}")
    a.e(f"v_max3_f32 v14, v{S+3}, v{S+4}, v{S+5}")
    a.e(f"v_max3_f32 v13, v13, v{S+6}, v{S+7}")
    a.e(f"v_max3_f32 v14, v14, v{S+8}, v{S+9}")
    a.e(f"v_max3_f32 v13, v13, v{S+10}, v{S+11}")
    a.e(f"v_max3_f32 v14, v14, v{S+12}, v{S+13}")
    a.e(f"v_max3_f32 v13, v13, v{S+14}, v{S+15}")
    a.e("v_max_f32 v13, v13, v14")
    a.e("v_mov_b32 v14, v13")
    a.e("s_nop 1")
    a.e("v_permlane32_swap_b32 v13, v14")
    a.e("v_max_f32 v13, v13, v14")
    for i in range(16):
        a.e(f"v_sub_f32 v{S+i}, v{S+i}, v13")
    for i in range(16):
        a.e(f"v_sub_f32 v{vNEGM+i}, 0, v13")
    for e in range(6):
        E(a, 0, e)
        if e >= 1: Ad(a, 0, e - 1)
        else: a.e("s_nop 0")
        if e >= 2 and e % 2 == 0: Cv(a, 0, (e - 2) // 2)
    a.stamp(3)
    a.e("s_waitcnt lgkmcnt(0)")
    ex0 = {2: [f"v_lshl_add_u32 v{vKA[3]}, s{sKB}, 14, v{vKC[3]}"]}
    ex1 = {2: [f"s_add_u32 s{sLOOP}, s{sLOOP}, 1"],
           6: [f"v_lshl_add_u32 v{vVA[0]}, s{sKB}, 14, v{vVC[0]}"],
           8: [f"v_lshl_add_u32 v{vVA[1]}, s{sKB}, 14, v{vVC[1]}", f"s_add_u32 s{sKB}, s{sKB}, 1"],
           9: [f"s_and_b32 s{sKB}, s{sKB}, 3"],
           10: [f"v_lshl_add_u32 v{vKA[0]}, s{sKB}, 14, v{vKC[0]}"],
           11: [f"v_lshl_add_u32 v{vKA[1]}, s{sKB}, 14, v{vKC[1]}"],
           14: [f"v_lshl_add_u32 v{vKA[2]}, s{sKB}, 14, v{vKC[2]}", f"s_cmp_eq_u32 s{sLOOP}, 0"]}
    dry = A(); lg = LG(); lg.inloop = True
    for s_ in range(8): lg.issue(("K", s_))
    for n in range(7): lg.issue(("V", 0, n))
    lg.done = lg.n
    slot(dry, lg, 0); slot(dry, lg, 1)
    st0 = (lg.n - lg.done)
    SK = int(OPT.get("skew", "0"))
    ncopy = 4 if SK else 1
    import copy
    if ncopy > 1:
        for w in range(1, 4):
            a.e(f"s_cmp_eq_u32 s{sWAVE}, {w}")
            a.e(f"s_cbranch_scc1 L_main_loop{w}")
    lg0 = lg
    for w in range(ncopy):
        lg = copy.deepcopy(lg0)
        sk = [f"s_nop {w*SK//4 - 1}"] if w * SK >= 4 else []
        e0 = dict(ex0); e1 = dict(ex1); e2 = {}
        e0[0] = sk; e1[0] = sk; e2[0] = sk
        a.l.append(".p2align 6")
        a.lab(f"L_main_loop{w}")
        slot(a, lg, 0, extra=e0)
        slot(a, lg, 1, extra=e1)
        assert (lg.n - lg.done) == st0, (lg.n - lg.done, st0)
        a.e(f"s_cbranch_scc0 L_main_loop{w}")
        slot(a, lg, 0, kr=False, extra=e2)
        if w < ncopy - 1 or True:
            pass
        if ncopy > 1 and w < ncopy - 1:
            a.e("s_branch L_main_last")
    a.lab("L_main_last")
    if "oldtail" in FLAGS:
        slot(a, lg, 1, qk=False, kr=False, vnext=False, bar=False, smn=False)
        a.stamp(4); a.stamp(5)
        a.e(f"v_and_b32 v14, 16, v{vLANE}")
        a.e("v_cmp_eq_u32 vcc, 0, v14")
        a.e("s_nop 4")
        a.e(f"v_cndmask_b32 v13, v{vLA+1}, v{vLA}, vcc")
        a.e(f"v_cmp_nlt_f32 vcc, v13, s{sTHR}")
        a.e("v_rcp_f32 v15, v13")
        a.e(f"s_lshl_b32 s{sROW0}, s{sWAVE}, 5")
        a.e(f"s_lshl_b32 s{sPRIV}, s{sWAVE}, 13")
        a.e("s_mov_b64 s[56:57], -1")
        a.e("s_cbranch_vccnz L_slow")
        a.e("s_nop 3")
        store_out(a, stb)
    else:
        cur = 1
        for n in range(7, 16):
            vread(a, lg, cur, n, cur * 8192)
        a.e(f"v_and_b32 v14, 16, v{vLANE}")
        a.e("v_cmp_eq_u32 s[60:61], 0, v14" if not DBG else "v_cmp_eq_u32 s[76:77], 0, v14")
        msk = "s[60:61]" if not DBG else "s[76:77]"
        E(a, cur, 6); E(a, cur, 7); Cv(a, cur, 2)
        E(a, cur, 8); Cv(a, cur, 3)
        order0 = [(0, t) for t in range(4)]
        ee = 9
        a.e("s_nop 1")
        mfma16(a, vLA, vONES, vP[cur], vLA)
        for (ks, t) in order0:
            f = ks * 4 + t
            lg.need(a, [("V", cur, 2 * f + 1)])
            mfma32(a, vO + 16 * t, vV + 4 * f, vP[cur] + 4 * ks, vO + 16 * t)
            for _ in range(2):
                if ee <= 15:
                    E(a, cur, ee)
                    if ee % 2 == 0: Cv(a, cur, (ee - 2) // 2)
                    ee += 1
        a.e("s_nop 0")
        Cv(a, cur, 7)
        a.e(f"s_lshl_b32 s{sROW0}, s{sWAVE}, 5")
        a.e(f"s_lshl_b32 s{sPRIV}, s{sWAVE}, 13")
        mfma16(a, vLA, vONES, vP[cur] + 4, vLA)
        for t in range(4):
            f = 4 + t
            lg.need(a, [("V", cur, 2 * f + 1)])
            mfma32(a, vO + 16 * t, vV + 4 * f, vP[cur] + 4, vO + 16 * t)
            if t == 1:
                a.e("s_mov_b64 s[56:57], -1")
                a.e("s_nop 3")
                a.e(f"v_cndmask_b32 v13, v{vLA+1}, v{vLA}, {msk}")
                a.e(f"v_cmp_nlt_f32 vcc, v13, s{sTHR}")
                a.e("v_rcp_f32 v15, v13")
        a.stamp(4); a.stamp(5)
        a.e("s_cbranch_vccnz L_slow")
        if "ldsout" in FLAGS:
            store_out_lds(a, stb)
        else:
            a.e("s_nop 4")
            store_out(a, stb)
    a.dump()
    a.e("s_endpgm")

    hD = [4, 5, 243, 244]; hKC = [6, 7]; hVC = [8, 9]; hKA = [11, 12]; hVA = [240, 241, 245, 246]; hL = 10
    hQ = 16; hNEGM = 32; hS = [36, 40]; hP = 44; hK = 48; hV = 80; hO = 112; hX = 144
    a.lab("L_helper")
    a.e("s_setprio 2")
    a.e(f"s_sub_u32 s{sH}, s{sWAVE}, 4")
    a.e(f"s_lshr_b32 s{sT0}, s{sH}, 1")
    a.e(f"s_and_b32 s{sT1}, s{sH}, 1")
    a.e(f"s_lshl_b32 s{sT2}, s{sT1}, 12")
    a.e(f"s_lshl_b32 s{sT3}, s{sT0}, 10")
    a.e(f"s_add_u32 s{sT2}, s{sT2}, s{sT3}")
    a.e(f"s_add_u32 m0, s{sT2}, {Q9ST:#x}")
    a.e(f"s_lshl_b32 s{sT2}, s{sT1}, 7")
    a.e(f"s_lshl_b32 s{sT3}, s{sT0}, 11")
    a.e(f"s_add_u32 s{sT2}, s{sT2}, s{sT3}")
    a.e(f"s_add_u32 s{sT2}, s{sT2}, s{sQOFF}")
    a.e(f"s_add_u32 s{sT2}, s{sT2}, 0x8000")
    a.e(f"s_cmp_eq_u32 s{sT0}, 1")
    a.e(f"s_cselect_b32 s{sT3}, 64, 0")
    a.e(f"v_xor_b32 v13, s{sT3}, v14")
    a.e(f"buffer_load_dwordx4 v13, s[{sQSRD}:{sQSRD+3}], s{sT2} offen{qb} lds")
    a.e(f"s_cselect_b32 s{sDSRD}, s{sVSRD}, s{sKSRD}")
    a.e(f"s_cselect_b32 s{sDSRD+1}, s{sVSRD+1}, s{sKSRD+1}")
    a.e("s_cbranch_scc1 L_h_vpat")
    a.e(f"v_mov_b32 v{hD[0]}, v14")
    a.e(f"v_add_u32 v{hD[1]}, 1024, v15")
    a.e("s_branch L_h_patdone")
    a.lab("L_h_vpat")
    a.e(f"v_bfe_u32 v2, v{vLANE}, 4, 1")
    a.e("v_lshlrev_b32 v2, 2, v2")
    a.e(f"v_lshrrev_b32 v3, 5, v{vLANE}")
    a.e("v_lshl_add_u32 v2, v3, 1, v2")
    a.e(f"v_and_b32 v3, 7, v{vLANE}")
    a.e("v_xor_b32 v2, v2, v3")
    a.e("v_lshlrev_b32 v2, 4, v2")
    a.e(f"v_lshrrev_b32 v3, 3, v{vLANE}")
    a.e(f"v_lshl_add_u32 v{hD[0]}, v3, 8, v2")
    a.e(f"v_add_u32 v{hD[1]}, 1024, v{hD[0]}")
    a.lab("L_h_patdone")
    a.e(f"v_add_u32 v{hD[2]}, 2048, v{hD[0]}")
    a.e(f"v_add_u32 v{hD[3]}, 2048, v{hD[1]}")
    a.e(f"s_add_u32 s{sDSRD}, s{sDSRD}, s{sKVOFF}")
    a.e(f"s_addc_u32 s{sDSRD+1}, s{sDSRD+1}, 0")
    a.e(f"s_mov_b32 s{sDSRD+2}, 262144")
    a.e(f"s_mov_b32 s{sDSRD+3}, 0x20000")
    a.e(f"s_sub_u32 s{sOFF}, 1, s{sT0}")
    a.e(f"s_lshl_b32 s{sLDSB}, s{sT0}, 16")
    a.e(f"s_lshl_b32 s{sT0}, s{sT1}, 12")
    a.e(f"s_add_u32 s{sLDSB}, s{sLDSB}, s{sT0}")
    a.e(f"s_lshl_b32 s{sGB}, s{sT1}, 7")
    a.e(f"s_mov_b32 s{sNEXT}, 0")
    a.e(f"s_mov_b32 s{sSINK}, {SINK:#x}")

    def issue():
        a.e(f"s_and_b32 s{sT0}, s{sNEXT}, 0xffff")
        a.e(f"s_add_u32 s{sT0}, s{sT0}, s{sLDSB}")
        a.e(f"s_cmp_lt_u32 s{sNEXT}, 0x40000")
        a.e(f"s_cselect_b32 m0, s{sT0}, s{sSINK}")
        if OPT["order"] == "lock":
            a.e(f"s_add_u32 s{sT1}, s{sNEXT}, s{sGB}")
        else:
            msk = {"rot4": 3, "rot8": 7}[OPT["order"]] << 13
            a.e(f"s_add_u32 s{sT1}, s{sNEXT}, s{sROT}")
            a.e(f"s_and_b32 s{sT1}, s{sT1}, {msk:#x}")
            a.e(f"s_andn2_b32 s{sT2}, s{sNEXT}, {msk:#x}")
            a.e(f"s_or_b32 s{sT1}, s{sT1}, s{sT2}")
            a.e(f"s_add_u32 s{sT1}, s{sT1}, s{sGB}")
        for rg in range(4):
            a.e(f"buffer_load_dwordx4 v{hD[rg]}, s[{sDSRD}:{sDSRD+3}], s{sT1} offen offset:{rg*1024}{kvb} lds")
        a.e(f"s_add_u32 s{sNEXT}, s{sNEXT}, 0x2000")

    a.e(f"s_lshl_b32 s{sROT}, s{sMEM}, {14 if OPT['order']=='rot8' else 13}")
    a.e(f"s_lshl_b32 s{sT3}, s{sOFF}, 13")
    a.lab("L_h_init")
    issue()
    a.e(f"s_cmp_le_u32 s{sNEXT}, s{sT3}")
    a.e("s_cbranch_scc1 L_h_init")
    a.e(f"v_and_b32 v2, 15, v{vLANE}")
    a.e(f"v_lshrrev_b32 v3, 4, v{vLANE}")
    a.e("v_lshrrev_b32 v13, 1, v2")
    a.e("v_xor_b32 v13, v13, v3")
    a.e("v_lshlrev_b32 v13, 4, v13")
    a.e(f"v_lshl_add_u32 v{hKC[0]}, v2, 7, v13")
    a.e(f"v_xor_b32 v{hKC[1]}, 64, v{hKC[0]}")
    a.e(f"v_bfe_u32 v13, v{vLANE}, 2, 2")
    a.e("v_lshl_add_u32 v14, v3, 2, v13")
    a.e("v_lshlrev_b32 v14, 7, v14")
    a.e("v_lshrrev_b32 v13, 1, v13")
    a.e("v_lshl_add_u32 v14, v13, 6, v14")
    a.e(f"v_and_b32 v13, 3, v{vLANE}")
    a.e("v_lshl_add_u32 v14, v13, 3, v14")
    a.e("v_and_b32 v13, 1, v3")
    a.e("v_lshl_add_u32 v14, v13, 5, v14")
    a.e(f"v_add_u32 v{hVC[0]}, {VRING:#x}, v14")
    a.e(f"v_mov_b32 v{hL}, 0")
    for i in range(32):
        a.e(f"v_mov_b32 v{hO+i}, 0")
    a.e(f"v_mov_b32 v13, {CNT:#x}")
    a.e("v_mov_b32 v14, 0")
    a.e("ds_write_b32 v13, v14")
    a.e(f"s_lshl_b32 s{sBS}, s{sH}, 13")
    a.stamp(2)

    def h_kreads(addr, off=0, us=(0, 1), dst=hK):
        for u in us:
            for s in range(4):
                a.e(f"ds_read_b128 {vr(dst+(u*4+s)*4,4)}, v{addr[s&1]} offset:{off+(s>>1)*4096+u*2048}")

    a.pstamp(3)
    a.e("s_waitcnt vmcnt(4) lgkmcnt(0)")
    a.pstamp(4)
    a.e("s_barrier")
    issue(); issue()
    a.pstamp(5)
    h_kreads(hKC, off=Q9ST, us=(0,), dst=hQ)
    h_kreads(hKC)
    a.e("s_waitcnt vmcnt(8) lgkmcnt(0)")
    a.e("s_barrier")
    issue(); issue()
    scale_q(a, hQ, 16, [13, 14, 15, 242])
    a.e("s_nop 1")
    for u in range(2):
        for s in range(4):
            mfma16(a, hS[u], hK + (u * 4 + s) * 4, hQ + 4 * s, "0" if s == 0 else hS[u])
    a.e("s_nop 7")
    a.e("s_nop 1")
    a.e(f"v_max3_f32 v13, v{hS[0]}, v{hS[0]+1}, v{hS[0]+2}")
    a.e(f"v_max3_f32 v13, v13, v{hS[0]+3}, v{hS[1]}")
    a.e(f"v_max3_f32 v13, v13, v{hS[1]+1}, v{hS[1]+2}")
    a.e(f"v_max_f32 v13, v13, v{hS[1]+3}")
    a.e("v_mov_b32 v14, v13")
    a.e("s_nop 1")
    a.e("v_permlane32_swap_b32 v13, v14")
    a.e("v_max_f32 v13, v13, v14")
    a.e("v_mov_b32 v14, v13")
    a.e("s_nop 1")
    a.e("v_permlane16_swap_b32 v13, v14")
    a.e("v_max_f32 v13, v13, v14")
    for i in range(4):
        a.e(f"v_sub_f32 v{hNEGM+i}, 0, v13")
    a.stamp(3)
    a.e(f"s_mov_b32 s{sN}, 31")
    cnt = [0]
    ool = []
    def sync():
        cnt[0] += 1
        tag = cnt[0]
        a.e(f"s_sub_u32 s{sN}, s{sN}, 1")
        a.e(f"s_cmp_ge_u32 s{sN}, 29")
        a.e(f"s_cbranch_scc1 L_sk_{tag}")
        a.e("s_waitcnt vmcnt(20) lgkmcnt(0)")
        if "nobar" not in FLAGS: a.e("s_barrier")
        a.lab(f"L_si_{tag}")
        if "nodma" not in FLAGS: issue()
        a.lab(f"L_sd_{tag}")
        ool.append(tag)
    a.e(f"s_mov_b32 s{sK}, s{sH}")
    a.lab("L_h_pre")
    a.e(f"s_sub_u32 s{sK}, s{sK}, 1")
    a.e("s_cbranch_scc1 L_h_go")
    sync()
    a.e("s_branch L_h_pre")
    a.lab("L_h_go")
    a.e(f"s_mov_b32 s{sK}, {(-8) & 0xffffffff:#x}")
    def h_sm(u):
        S_ = hS[u]
        for i in range(4):
            a.e(f"v_exp_f32 v{S_+i}, v{S_+i}")
        a.e("s_nop 0")
        for i in range(4):
            a.e(f"v_add_f32 v{hL}, v{hL}, v{S_+i}")
        a.e(f"v_cvt_pk_bf16_f32 v{hP+2*u}, v{S_}, v{S_+1}")
        a.e(f"v_cvt_pk_bf16_f32 v{hP+2*u+1}, v{S_+2}, v{S_+3}")
    a.l.append(".p2align 6")
    a.lab("L_h_loop")
    nh = "nohelp" in FLAGS
    if not nh:
        for e in range(2):
            a.e(f"v_add_u32 v{hKA[e]}, s{sBS}, v{hKC[e]}")
        a.e(f"v_add_u32 v{hVA[0]}, s{sBS}, v{hVC[0]}")
        for e in range(1, 4):
            a.e(f"v_xor_b32 v{hVA[e]}, {32*e}, v{hVA[0]}")
        a.e(f"s_add_u32 s{sBS}, s{sBS}, 0x8000")
        a.e(f"s_and_b32 s{sBS}, s{sBS}, 0xffff")
        h_kreads(hKA)
        a.e("s_waitcnt lgkmcnt(4)")
        for s in range(4):
            mfma16(a, hS[0], hK + s * 4, hQ + 4 * s, hNEGM if s == 0 else hS[0])
        for t16 in range(4):
            for u in range(2):
                a.e(f"ds_read_b64_tr_b16 {vr(hV+4*t16+2*u,2)}, v{hVA[t16&3]} offset:{(t16>>2)*4096+u*2048}")
    sync()
    if not nh:
        for s in range(4):
            mfma16(a, hS[1], hK + (4 + s) * 4, hQ + 4 * s, hNEGM if s == 0 else hS[1])
        for t16 in range(4, 8):
            for u in range(2):
                a.e(f"ds_read_b64_tr_b16 {vr(hV+4*t16+2*u,2)}, v{hVA[t16&3]} offset:{(t16>>2)*4096+u*2048}")
        h_sm(0)
    sync()
    if not nh:
        h_sm(1)
        a.e("s_nop 1")
        for t16 in range(4):
            mfma16(a, hO + 4 * t16, hV + 4 * t16, hP, hO + 4 * t16)
    sync()
    if not nh:
        for t16 in range(4, 8):
            mfma16(a, hO + 4 * t16, hV + 4 * t16, hP, hO + 4 * t16)
    sync()
    a.e(f"s_add_u32 s{sK}, s{sK}, 1")
    a.e("s_cbranch_scc0 L_h_loop")
    a.e("s_branch L_h_fin")
    for tag in ool:
        a.lab(f"L_sk_{tag}")
        a.e(f"s_cmp_gt_u32 s{sN}, 30")
        a.e(f"s_cbranch_scc1 L_st_{tag}")
        a.e(f"s_cmp_eq_u32 s{sN}, 29")
        a.e(f"s_cbranch_scc1 L_sr_{tag}")
        a.e("s_waitcnt vmcnt(12)")
        a.lab(f"L_sr_{tag}")
        a.e("s_waitcnt vmcnt(16) lgkmcnt(0)")
        if "nobar" not in FLAGS: a.e("s_barrier")
        issue()
        a.e(f"s_branch L_si_{tag}")
        a.lab(f"L_st_{tag}")
        a.e(f"s_mov_b32 s{sN}, 0")
        a.e("s_waitcnt lgkmcnt(0)")
        a.e("s_nop 7")
        a.e(f"s_branch L_sd_{tag}")
    a.lab("L_h_fin")
    a.stamp(4)
    a.e(f"v_mov_b32 v14, v{hL}")
    a.e("s_nop 1")
    a.e(f"v_permlane32_swap_b32 v{hL}, v14")
    a.e(f"v_add_f32 v{hL}, v{hL}, v14")
    a.e(f"v_mov_b32 v14, v{hL}")
    a.e("s_nop 1")
    a.e(f"v_permlane16_swap_b32 v{hL}, v14")
    a.e(f"v_add_f32 v{hL}, v{hL}, v14")
    a.e(f"s_lshl_b32 s{sT0}, s{sH}, 13")
    a.e(f"s_add_u32 s{sT0}, s{sT0}, {CAREA:#x}")
    a.e(f"v_lshlrev_b32 v13, 4, v{vLANE}")
    a.e(f"v_add_u32 v14, s{sT0}, v13")
    a.e("s_nop 4")
    for t16 in range(8):
        a.e(f"ds_write_b128 v14, {vr(hO+4*t16,4)} offset:{t16*1024}")
    a.e(f"s_lshl_b32 s{sT0}, s{sH}, 8")
    a.e(f"s_add_u32 s{sT0}, s{sT0}, {LAREA:#x}")
    a.e(f"v_lshlrev_b32 v15, 2, v{vLANE}")
    a.e(f"v_add_u32 v14, s{sT0}, v15")
    a.e(f"ds_write_b32 v14, v{hL}")
    a.e("s_waitcnt lgkmcnt(0)")
    a.e(f"v_mov_b32 v14, {CNT:#x}")
    a.e("v_mov_b32 v12, 1")
    a.e("s_mov_b64 exec, 1")
    a.e("ds_add_u32 v14, v12")
    a.e("s_mov_b64 exec, -1")
    a.lab("L_h_spin")
    a.e("ds_read_b32 v12, v14")
    a.e("s_waitcnt lgkmcnt(0)")
    a.e(f"v_readfirstlane_b32 s{sT0}, v12")
    a.e("s_nop 3")
    a.e(f"s_cmp_lt_u32 s{sT0}, 4")
    a.e("s_cbranch_scc1 L_h_spin")
    a.stamp(5)
    a.e(f"s_lshl_b32 s{sT0}, s{sH}, 11")
    a.e(f"s_add_u32 s{sT0}, s{sT0}, {CAREA:#x}")
    a.e(f"v_add_u32 v14, s{sT0}, v13")
    for x in range(4):
        for k in range(2):
            a.e(f"ds_read_b128 {vr(hX+(x*2+k)*4,4)}, v14 offset:{x*8192+k*1024}")
    a.e(f"v_add_u32 v14, {LAREA:#x}, v15")
    for x in range(4):
        a.e(f"ds_read_b32 v{hK+x}, v14 offset:{x*256}")
    a.e("s_waitcnt lgkmcnt(0)")
    a.e(f"v_add_f32 v13, v{hK}, v{hK+1}")
    a.e(f"v_add_f32 v14, v{hK+2}, v{hK+3}")
    a.e("v_add_f32 v13, v13, v14")
    a.e(f"v_cmp_nlt_f32 vcc, v13, s{sTHR}")
    a.e("v_rcp_f32 v15, v13")
    a.e("s_nop 3")
    a.e("s_cbranch_vccnz L_h_bad")
    for k in range(2):
        for i in range(4):
            r0 = hX + k * 4 + i
            a.e(f"v_add_f32 v{r0}, v{r0}, v{r0+8}")
            a.e(f"v_add_f32 v{r0+16}, v{r0+16}, v{r0+24}")
            a.e(f"v_add_f32 v{r0}, v{r0}, v{r0+16}")
            a.e(f"v_mul_f32 v{r0}, v{r0}, v15")
    for k in range(2):
        r0 = hX + k * 4
        a.e(f"v_cvt_pk_bf16_f32 v{hK+8+2*k}, v{r0}, v{r0+1}")
        a.e(f"v_cvt_pk_bf16_f32 v{hK+8+2*k+1}, v{r0+2}, v{r0+3}")
    a.e(f"v_lshlrev_b32 v14, 8, v2")
    a.e(f"v_lshl_add_u32 v14, v3, 3, v14")
    a.e(f"s_lshl_b32 s{sT0}, s{sH}, 6")
    a.e(f"s_add_u32 s{sT0}, s{sT0}, 0x8000")
    a.e(f"v_add_u32 v14, s{sT0}, v14")
    for k in range(2):
        a.e(f"buffer_store_dwordx2 {vr(hK+8+2*k,2)}, v14, s[{sOSRD}:{sOSRD+3}], s{sQOFF} offen offset:{32*k}{stb}")
    a.dump()
    a.lab("L_end")
    a.e("s_endpgm")
    a.lab("L_h_bad")
    a.e(f"s_cmp_lg_u32 s{sH}, 0")
    a.e("s_cbranch_scc1 L_end")
    a.e(f"s_mov_b32 s{sROW0}, 128")
    a.e(f"s_mov_b32 s{sPRIV}, {4*8192}")
    a.e("s_mov_b32 s56, 0x0000ffff")
    a.e("s_mov_b32 s57, 0x0000ffff")
    a.lab("L_slow")
    a.e("s_waitcnt vmcnt(0) lgkmcnt(0)")
    a.e("s_nop 7")
    a.e("s_nop 7")
    a.e(f"v_and_b32 v2, 31, v{vLANE}")
    a.e(f"v_lshrrev_b32 v3, 5, v{vLANE}")
    a.e(f"v_lshlrev_b32 v4, 8, v2")
    a.e(f"v_lshl_add_u32 v4, v3, 4, v4")
    a.e(f"s_lshl_b32 s{sT0}, s{sROW0}, 8")
    a.e(f"v_add_u32 v{vQO}, s{sT0}, v4")
    for s in range(8):
        a.e(f"buffer_load_dwordx4 {vr(vQ+4*s,4)}, v{vQO}, s[{sQSRD}:{sQSRD+3}], s{sQOFF} offen offset:{32*s}")
    a.e(f"v_bfe_u32 v13, v{vLANE}, 4, 1")
    a.e("v_lshlrev_b32 v13, 2, v13")
    a.e("v_lshl_add_u32 v13, v3, 1, v13")
    a.e(f"v_and_b32 v14, 7, v{vLANE}")
    a.e("v_xor_b32 v13, v13, v14")
    a.e("v_lshlrev_b32 v13, 4, v13")
    a.e(f"v_lshrrev_b32 v14, 3, v{vLANE}")
    a.e("v_lshl_add_u32 v5, v14, 8, v13")
    a.e(f"v_bfe_u32 v13, v{vLANE}, 2, 2")
    a.e("v_lshl_add_u32 v14, v3, 2, v13")
    a.e("v_lshlrev_b32 v14, 7, v14")
    a.e("v_lshrrev_b32 v13, 1, v13")
    a.e("v_lshl_add_u32 v14, v13, 6, v14")
    a.e(f"v_bfe_u32 v13, v{vLANE}, 4, 1")
    a.e("v_xor_b32 v13, v13, v3")
    a.e("v_lshl_add_u32 v14, v13, 5, v14")
    a.e(f"v_and_b32 v13, 3, v{vLANE}")
    a.e("v_lshl_add_u32 v14, v13, 3, v14")
    a.e(f"v_add_u32 v{vVA[0]}, s{sPRIV}, v14")
    a.e(f"v_xor_b32 v{vVA[1]}, 64, v{vVA[0]}")
    a.e("s_waitcnt vmcnt(0)")
    scale_q(a, vQ, 32, [13, 14, 15, 2])
    a.e("v_mov_b32 v6, 0xff800000")
    a.e(f"s_mov_b32 s{sT1}, s{sKVOFF}")
    a.e(f"s_mov_b32 s{sN}, 0")
    def sl_qk(c0):
        for s in range(8):
            a.e(f"buffer_load_dwordx4 {vr(vK+4*s,4)}, v4, s[{sKSRD}:{sKSRD+3}], s{sT1} offen offset:{32*s}")
        a.e("s_waitcnt vmcnt(0)")
        for s in range(8):
            mfma32(a, vS[0], vK + 4 * s, vQ + 4 * s, c0 if s == 0 else vS[0])
        a.e("s_nop 7")
        a.e("s_nop 7")
    a.lab("L_slow_p1")
    sl_qk("0")
    for i in range(0, 16, 2):
        a.e(f"v_max3_f32 v6, v6, v{vS[0]+i}, v{vS[0]+i+1}")
    a.e(f"s_add_u32 s{sT1}, s{sT1}, 0x2000")
    a.e(f"s_add_u32 s{sN}, s{sN}, 1")
    a.e(f"s_cmp_lt_u32 s{sN}, 32")
    a.e("s_cbranch_scc1 L_slow_p1")
    a.e("v_mov_b32 v14, v6")
    a.e("s_nop 1")
    a.e("v_permlane32_swap_b32 v6, v14")
    a.e("v_max_f32 v6, v6, v14")
    for i in range(16):
        a.e(f"v_sub_f32 v{vNEGM+i}, 0, v6")
    for i in range(64):
        a.e(f"v_mov_b32 v{vO+i}, 0")
    a.e(f"v_mov_b32 v{vL[0]}, 0")
    a.e(f"s_mov_b32 s{sT1}, s{sKVOFF}")
    a.e(f"s_mov_b32 s{sN}, 0")
    a.lab("L_slow_p2")
    for p in range(8):
        hf = p >> 2; rg = p & 3
        a.e(f"s_add_u32 m0, s{sPRIV}, {hf*4096 + rg*1024}")
        a.e(f"s_add_u32 s{sT2}, s{sT1}, {rg*2048 + hf*128}")
        a.e(f"buffer_load_dwordx4 v5, s[{sVSRD}:{sVSRD+3}], s{sT2} offen lds")
    sl_qk(vNEGM)
    lg2 = LG()
    for n in range(16):
        vread(a, lg2, 0, n, 0)
        if n == 7: a.e("s_waitcnt lgkmcnt(0)")
    for e in range(16):
        a.e(f"v_exp_f32 v{vS[0]+e}, v{vS[0]+e}")
    a.e("s_nop 0")
    for e in range(16):
        a.e(f"v_add_f32 v{vL[0]}, v{vL[0]}, v{vS[0]+e}")
    for k in range(8):
        Cv(a, 0, k)
    a.e("s_waitcnt lgkmcnt(0)")
    a.e("s_nop 1")
    for ks in range(2):
        for t in range(4):
            mfma32(a, vO + 16 * t, vV + 4 * (ks * 4 + t), vP[0] + 4 * ks, vO + 16 * t)
    a.e(f"s_add_u32 s{sT1}, s{sT1}, 0x2000")
    a.e(f"s_add_u32 s{sN}, s{sN}, 1")
    a.e(f"s_cmp_lt_u32 s{sN}, 32")
    a.e("s_cbranch_scc1 L_slow_p2")
    a.e(f"v_mov_b32 v14, v{vL[0]}")
    a.e("s_nop 1")
    a.e(f"v_permlane32_swap_b32 v{vL[0]}, v14")
    a.e(f"v_add_f32 v13, v{vL[0]}, v14")
    a.e("v_rcp_f32 v15, v13")
    a.e("s_nop 7")
    a.e("s_nop 7")
    for t in range(4):
        for k in range(2):
            o = vO + 16 * t + 8 * k
            x = vX + 4 * (2 * t + k)
            for i in range(8):
                a.e(f"v_mul_f32 v{o+i}, v{o+i}, v15")
            for i in range(4):
                a.e(f"v_cvt_pk_bf16_f32 v{x+i}, v{o+2*i}, v{o+2*i+1}")
            a.e("s_nop 1")
            a.e(f"v_permlane32_swap_b32 v{x}, v{x+2}")
            a.e(f"v_permlane32_swap_b32 v{x+1}, v{x+3}")
    a.e("s_mov_b64 exec, s[56:57]")
    for t in range(4):
        for k in range(2):
            x = vX + 4 * (2 * t + k)
            a.e(f"buffer_store_dwordx4 {vr(x,4)}, v{vQO}, s[{sOSRD}:{sOSRD+3}], s{sQOFF} offen offset:{64*t+32*k}")
    a.e("s_endpgm")
    a.l.append('.section .rodata,"a"')
    a.l.append(".p2align 6")
    a.l.append(f".amdhsa_kernel {NAME}_kernel")
    a.l.append("  .amdhsa_next_free_vgpr 256")
    a.l.append("  .amdhsa_next_free_sgpr 80")
    a.l.append("  .amdhsa_accum_offset 256")
    a.l.append("  .amdhsa_group_segment_fixed_size 0")
    a.l.append("  .amdhsa_kernarg_size 48")
    a.l.append("  .amdhsa_user_sgpr_count 2")
    a.l.append("  .amdhsa_user_sgpr_kernarg_segment_ptr 1")
    a.l.append("  .amdhsa_system_sgpr_workgroup_id_x 1")
    a.l.append(".end_amdhsa_kernel")
    return a.text()

if __name__ == "__main__":
    out = sys.argv[1] if len(sys.argv) > 1 else OUT
    for x in sys.argv[2:]:
        if x == "dbg": DBG = True
        elif "=" in x:
            k, v = x.split("="); OPT[k] = v.replace("+", " ").replace("none", "")
        else: FLAGS.add(x)
    open(out, "w").write(gen())
    print("wrote", out)
```

```python
import sys, struct, math

NAME = "standalone__gqa_softmax__near_ridge"
OUT = f"cdna_kernels/{NAME}.s"

def f32bits(x):
    return struct.unpack("<I", struct.pack("<f", x))[0]

CSCALE = (128 ** -0.5) * math.log2(math.e)
LTHRESH = 2.0 ** 40

KRING = 0
VRING = 65536
LAREA = 131072
CNT = LAREA + 1024
SINK = LAREA + 2048
LDS_BYTES = SINK + 4096
CAREA = VRING
QST = VRING + 4 * 8192
Q9ST = KRING + 7 * 8192

DBG = False
FLAGS = set()
OPT = {"kv": "nt", "q": "nt", "st": "", "order": "lock"}

sWAVE = 3
class A:
    def __init__(s):
        s.l = []
    def e(s, t):
        s.l.append("  " + t)
    def lab(s, t):
        s.l.append(t + ":")
    def c(s, t):
        s.l.append("  ; " + t)
    def text(s):
        return "\n".join(s.l) + "\n"
    def pstamp(s, i):
        if DBG and "pst" in FLAGS:
            s.e(f"s_memtime s[{60+2*i}:{61+2*i}]")
            s.e("s_waitcnt lgkmcnt(0)")
    def stamp(s, i):
        if DBG and ("pst" not in FLAGS or i == 1):
            s.e(f"s_memtime s[{60+2*i}:{61+2*i}]")
    def rstamp(s, i):
        if DBG:
            s.e(f"s_memrealtime s[{60+2*i}:{61+2*i}]")
    def dump(s):
        if not DBG: return
        s.e("s_load_dwordx2 s[56:57], s[0:1], 40")
        s.e("s_waitcnt vmcnt(0) lgkmcnt(0)")
        s.e("s_memtime s[72:73]")
        s.e("s_memrealtime s[74:75]")
        s.e("s_waitcnt lgkmcnt(0)")
        s.e(f"s_lshl_b32 s58, s2, 3")
        s.e(f"s_add_u32 s58, s58, s{sWAVE}")
        s.e("s_lshl_b32 s58, s58, 5")
        s.e("v_mov_b32 v250, s58")
        s.e("s_mov_b64 exec, 1")
        s.e("v_mov_b32 v251, s60")
        s.e("global_store_dword v250, v251, s[56:57]")
        for i in range(2, 7):
            s.e(f"s_sub_u32 s59, s{60+2*i}, s62")
            s.e("v_mov_b32 v251, s59")
            s.e(f"global_store_dword v250, v251, s[56:57] offset:{4*(i-1)}")
        s.e("v_mov_b32 v251, s74")
        s.e("global_store_dword v250, v251, s[56:57] offset:28")
        s.e("s_waitcnt vmcnt(0)")

def vr(b, n):
    return f"v[{b}:{b+n-1}]"

vLANE = 1
vKA = [4, 5, 6, 7]; vVA = [8, 9]; vKC = [240, 241, 242, 243]; vVC = [244, 245]
vL = [10, 11]; vQO = 12
vQ = 16; vNEGM = 48; vS = [64, 80]; vP = [96, 104]; vK = 112; vV = 144; vO = 176
vX = 112
vONES = 248; vLA = 252

sQSRD = 8; sKSRD = 12; sVSRD = 16; sOSRD = 20; sDSRD = 24
sG = 32; sMEM = 33; sHEAD = 34; sQOFF = 35; sKVOFF = 36; sC = 37; sLOOP = 38; sKB = 39; sVB = 40
sN = 41; sH = 42; sLDSB = 43; sOFF = 44; sNEXT = 45; sT0 = 46; sT1 = 47; sT2 = 48; sTHR = 49
sK = 50; sT3 = 51; sGB = 52; sSINK = 53; sROT = 54; sBS = 55; sROW0 = 58; sPRIV = 59; sQ9 = 56

class LG:
    def __init__(s):
        s.n = 0; s.done = 0; s.tag = {}; s.inloop = False
    def issue(s, tag):
        s.tag[tag] = s.n; s.n += 1
    def need(s, a, tags):
        m = max(s.tag[t] for t in tags)
        if m < s.done:
            return
        cnt = s.n - 1 - m
        assert cnt <= 15, cnt
        if "nowait" in FLAGS and s.inloop: a.e("s_nop 0")
        else: a.e(f"s_waitcnt lgkmcnt({cnt})")
        s.done = m + 1

def mfma32(a, d, A_, B_, c):
    cs = c if isinstance(c, str) else vr(c, 16)
    a.e(f"v_mfma_f32_32x32x16_bf16 {vr(d,16)}, {vr(A_,4)}, {vr(B_,4)}, {cs}")

def mfma16(a, d, A_, B_, c):
    cs = c if isinstance(c, str) else vr(c, 4)
    a.e(f"v_mfma_f32_16x16x32_bf16 {vr(d,4)}, {vr(A_,4)}, {vr(B_,4)}, {cs}")

def kread(a, lg, s, slotoff, addr=None, dst=None):
    ad = (addr or vKA)[s & 3]
    if not (FLAGS & {"nolds", "nok"}) or not lg.inloop:
        a.e(f"ds_read_b128 {vr((dst or vK)+4*s,4)}, v{ad} offset:{slotoff + (s>>2)*4096}")
    lg.issue(("K", s))

def vread(a, lg, tile, n, slotoff):
    f = n >> 1; jj = n & 1
    ks = f >> 2; t = f & 3
    if not (FLAGS & {"nolds", "nov"}) or not lg.inloop:
        a.e(f"ds_read_b64_tr_b16 {vr(vV+4*f+2*jj,2)}, v{vVA[t&1]} offset:{slotoff + (t>>1)*4096 + ks*2048 + jj*1024}")
    lg.issue(("V", tile, n))

def E(a, buf, e):
    if "noexp" not in FLAGS: a.e(f"v_exp_f32 v{vS[buf]+e}, v{vS[buf]+e}")
def Ad(a, buf, e):
    if "valuadd" in FLAGS: a.e(f"v_add_f32 v{vL[e&1]}, v{vL[e&1]}, v{vS[buf]+e}")
def Cv(a, buf, k): a.e(f"v_cvt_pk_bf16_f32 v{vP[buf]+k}, v{vS[buf]+2*k}, v{vS[buf]+2*k+1}")

def slot(a, lg, par, qk=True, kr=True, vnext=True, bar=True, smn=True, extra=None):
    cur = par; nxt = 1 - par
    extra = extra or {}
    for g in range(16):
        W = int(OPT.get("wg", "2"))
        if g < 8:
            if qk and g % W == 0:
                lg.need(a, [("K", g + i) for i in range(W)])
        else:
            if g % W == 0:
                f = g - 8
                lg.need(a, [("V", cur, 2 * (f + i) + 1) for i in range(W)])
        if g < 8:
            if qk:
                mfma32(a, vS[nxt], vK + 4 * g, vQ + 4 * g, vNEGM if g == 0 else vS[nxt])
        else:
            ks = (g - 8) >> 2; t = g & 3
            mfma32(a, vO + 16 * t, vV + 4 * (ks * 4 + t), vP[cur] + 4 * ks, vO + 16 * t)
        if g <= 8:
            vread(a, lg, cur, g + 7, cur * 8192)
        elif vnext:
            vread(a, lg, nxt, g - 9, nxt * 8192)
        if g % 2 == 1 and kr:
            kread(a, lg, (g - 1) // 2, par * 8192)
        if g <= 9:
            e = g + 6
            E(a, cur, e); Ad(a, cur, e - 1)
            if e % 2 == 0: Cv(a, cur, (e - 2) // 2)
        else:
            e = g - 10
            if smn: E(a, nxt, e)
            if e == 0:
                Ad(a, cur, 15); Cv(a, cur, 7)
            elif smn:
                Ad(a, nxt, e - 1)
                if e % 2 == 0: Cv(a, nxt, (e - 2) // 2)
        if "valuadd" not in FLAGS:
            l0, l1 = (int(x) for x in OPT.get("lpos", "4,12").split(","))
            if g == l0: mfma16(a, vLA, vONES, vP[cur], vLA)
            if g == l1: mfma16(a, vLA, vONES, vP[cur] + 4, vLA)
        if g == 0 and bar and "nobar" not in FLAGS:
            a.e("s_barrier")
        for x in extra.get(g, []):
            a.e(x)

def scale_q(a, base, n, t):
    for i in range(0, n, 2):
        r = base + i
        a.e(f"v_lshlrev_b32 v{t[0]}, 16, v{r}")
        a.e(f"v_and_b32 v{t[1]}, 0xffff0000, v{r}")
        a.e(f"v_lshlrev_b32 v{t[2]}, 16, v{r+1}")
        a.e(f"v_and_b32 v{t[3]}, 0xffff0000, v{r+1}")
        for k in range(4):
            a.e(f"v_mul_f32 v{t[k]}, s{sC}, v{t[k]}")
        a.e(f"v_cvt_pk_bf16_f32 v{r}, v{t[0]}, v{t[1]}")
        a.e(f"v_cvt_pk_bf16_f32 v{r+1}, v{t[2]}, v{t[3]}")

def store_out(a, stb):
    for t in range(4):
        for k in range(2):
            o = vO + 16 * t + 8 * k
            x = vX + 4 * (2 * t + k)
            for i in range(8):
                a.e(f"v_mul_f32 v{o+i}, v{o+i}, v15")
            for i in range(4):
                a.e(f"v_cvt_pk_bf16_f32 v{x+i}, v{o+2*i}, v{o+2*i+1}")
            a.e("s_nop 1")
            a.e(f"v_permlane32_swap_b32 v{x}, v{x+2}")
            a.e(f"v_permlane32_swap_b32 v{x+1}, v{x+3}")
            a.e(f"buffer_store_dwordx4 {vr(x,4)}, v{vQO}, s[{sOSRD}:{sOSRD+3}], s{sQOFF} offen offset:{64*t+32*k}{stb}")

def store_out_lds(a, stb):
    a.e(f"v_and_b32 v2, 31, v{vLANE}")
    a.e(f"v_lshrrev_b32 v3, 5, v{vLANE}")
    a.e(f"v_and_b32 v13, 15, v{vLANE}")
    a.e("v_xor_b32 v3, v3, v13")
    a.e("v_lshlrev_b32 v3, 4, v3")
    a.e("v_lshl_add_u32 v3, v2, 8, v3")
    a.e(f"v_add_u32 v3, s{sPRIV}, v3")
    a.e(f"v_lshrrev_b32 v2, 4, v{vLANE}")
    a.e("v_xor_b32 v13, v13, v2")
    a.e("v_lshlrev_b32 v13, 4, v13")
    a.e("v_lshl_add_u32 v13, v2, 8, v13")
    a.e(f"v_add_u32 v4, s{sPRIV}, v13")
    for j in range(1, 4):
        a.e(f"v_xor_b32 v{4+j}, {64*j}, v4")
    a.e(f"v_lshlrev_b32 v8, 4, v{vLANE}")
    a.e(f"s_lshl_b32 s{sT0}, s{sWAVE}, 13")
    a.e(f"s_add_u32 s{sT0}, s{sT0}, s{sQOFF}")
    a.e(f"s_add_u32 s{sT1}, s{sT0}, 4096")
    for t in range(4):
        for k in range(2):
            o = vO + 16 * t + 8 * k
            x = vX + 4 * (2 * t + k)
            for i in range(8):
                a.e(f"v_mul_f32 v{o+i}, v{o+i}, v15")
            for i in range(4):
                a.e(f"v_cvt_pk_bf16_f32 v{x+i}, v{o+2*i}, v{o+2*i+1}")
            a.e(f"v_xor_b32 v14, {(4*t+2*k)*16}, v3")
            a.e("s_nop 0")
            a.e(f"v_permlane32_swap_b32 v{x}, v{x+2}")
            a.e(f"v_permlane32_swap_b32 v{x+1}, v{x+3}")
            a.e(f"ds_write_b128 v14, {vr(x,4)}")
    a.e("s_waitcnt lgkmcnt(0)")
    for j in range(8):
        a.e(f"ds_read_b128 {vr(vV+4*j,4)}, v{4+(j&3)} offset:{j*1024}")
    for j in range(8):
        a.e(f"s_waitcnt lgkmcnt({7-j})")
        a.e(f"buffer_store_dwordx4 {vr(vV+4*j,4)}, v8, s[{sOSRD}:{sOSRD+3}], s{sT0 if j < 4 else sT1} offen offset:{(j&3)*1024}{stb}")

def kpat(a, d0, d1, lane, t0, t1):
    a.e(f"v_lshrrev_b32 v{t0}, 4, v{lane}")
    a.e(f"v_and_b32 v{t1}, 7, v{lane}")
    a.e(f"v_xor_b32 v{t0}, v{t0}, v{t1}")
    a.e(f"v_lshlrev_b32 v{t0}, 4, v{t0}")
    a.e(f"v_lshrrev_b32 v{t1}, 3, v{lane}")
    a.e(f"v_lshl_add_u32 v{d0}, v{t1}, 8, v{t0}")
    a.e(f"v_xor_b32 v{d1}, 64, v{d0}")

def gen():
    a = A()
    kvb = (" " + OPT["kv"]) if OPT["kv"] else ""
    qb = (" " + OPT["q"]) if OPT["q"] else ""
    stb = (" " + OPT["st"]) if OPT["st"] else ""
    hdr = open(f"cdna_kernels/{NAME}.s.ref").read().split("; @launch")[0]
    a.l.append(hdr.rstrip("\n"))
    a.l.append(f"; @launch grid=(256,1,1) block=(512,1,1) lds={LDS_BYTES}")
    a.l.append('.amdgcn_target "amdgcn-amd-amdhsa--gfx950"')
    a.l.append(".text")
    a.l.append(f".globl {NAME}_kernel")
    a.l.append(".p2align 8")
    a.l.append(f".type {NAME}_kernel,@function")
    a.lab(f"{NAME}_kernel")
    a.e("s_cmp_ge_u32 s2, 256")
    a.e("s_cbranch_scc1 L_end")
    a.rstamp(0); a.stamp(1)
    a.e("s_load_dwordx4 s[4:7], s[0:1], 0")
    a.e("s_load_dwordx4 s[28:31], s[0:1], 16")
    a.e("v_lshrrev_b32 v1, 6, v0")
    a.e(f"s_and_b32 s{sG}, s2, 7")
    a.e(f"v_readfirstlane_b32 s{sWAVE}, v1")
    a.e(f"v_and_b32 v{vLANE}, 63, v0")
    a.e(f"s_lshr_b32 s{sMEM}, s2, 5")
    a.e(f"s_lshl_b32 s{sMEM}, s{sMEM}, 3")
    a.e(f"s_add_u32 s{sG}, s{sG}, s{sMEM}")
    a.e(f"s_lshr_b32 s{sMEM}, s2, 3")
    a.e(f"s_and_b32 s{sMEM}, s{sMEM}, 3")
    a.e(f"s_lshl_b32 s{sHEAD}, s{sG}, 2")
    a.e(f"s_add_u32 s{sHEAD}, s{sHEAD}, s{sMEM}")
    a.e(f"s_mul_i32 s{sQOFF}, s{sHEAD}, 36864")
    a.e(f"s_lshl_b32 s{sKVOFF}, s{sG}, 18")
    a.e(f"s_mov_b32 s{sC}, {f32bits(CSCALE):#x}")
    a.e(f"s_mov_b32 s{sTHR}, {f32bits(LTHRESH):#x}")
    kpat(a, 14, 15, vLANE, 2, 3)
    a.e("s_waitcnt lgkmcnt(0)")
    a.pstamp(2)
    for srd, p, nb in ((sQSRD, 4, 9437184), (sKSRD, 6, 16777216), (sVSRD, 28, 16777216), (sOSRD, 30, 9437184)):
        a.e(f"s_mov_b32 s{srd}, s{p}")
        a.e(f"s_and_b32 s{srd+1}, s{p+1}, 0xffff")
        a.e(f"s_mov_b32 s{srd+2}, {nb}")
        a.e(f"s_mov_b32 s{srd+3}, 0x20000")
    a.e(f"s_cmp_ge_u32 s{sWAVE}, 4")
    a.e("s_cbranch_scc1 L_helper")

    a.c("---- main wave ----")
    a.e(f"s_lshl_b32 s{sT0}, s{sWAVE}, 13")
    a.e(f"s_add_u32 s{sT1}, s{sT0}, s{sQOFF}")
    a.e(f"s_add_u32 s{sT2}, s{sT0}, {QST:#x}")
    for p in range(8):
        hf = p >> 2; rg = p & 3
        a.e(f"s_add_u32 m0, s{sT2}, {hf*4096 + rg*1024}")
        a.e(f"s_add_u32 s{sT3}, s{sT1}, {rg*2048 + hf*128}")
        a.e(f"buffer_load_dwordx4 v{14 + (rg&1)}, s[{sQSRD}:{sQSRD+3}], s{sT3} offen{qb} lds")
    a.e(f"v_and_b32 v2, 31, v{vLANE}")
    a.e(f"v_lshrrev_b32 v3, 5, v{vLANE}")
    a.e(f"v_lshlrev_b32 v{vQO}, 8, v2")
    a.e(f"v_lshl_add_u32 v{vQO}, v3, 4, v{vQO}")
    a.e(f"v_add_u32 v{vQO}, s{sT0}, v{vQO}")
    a.e("v_bfe_u32 v13, v2, 1, 3")
    a.e("v_xor_b32 v13, v13, v3")
    a.e("v_lshlrev_b32 v13, 4, v13")
    a.e(f"v_lshl_add_u32 v{vKC[0]}, v2, 7, v13")
    for e in range(1, 4):
        a.e(f"v_xor_b32 v{vKC[e]}, {32*e}, v{vKC[0]}")
    a.e(f"v_bfe_u32 v13, v{vLANE}, 2, 2")
    a.e("v_lshl_add_u32 v14, v3, 2, v13")
    a.e("v_lshlrev_b32 v14, 7, v14")
    a.e("v_lshrrev_b32 v13, 1, v13")
    a.e("v_lshl_add_u32 v14, v13, 6, v14")
    a.e(f"v_bfe_u32 v13, v{vLANE}, 4, 1")
    a.e("v_xor_b32 v13, v13, v3")
    a.e("v_lshl_add_u32 v14, v13, 5, v14")
    a.e(f"v_and_b32 v13, 3, v{vLANE}")
    a.e(f"v_lshl_add_u32 v14, v13, 3, v14")
    a.e(f"v_add_u32 v{vVC[0]}, {VRING:#x}, v14")
    a.e(f"v_xor_b32 v{vVC[1]}, 64, v{vVC[0]}")
    a.e(f"v_mov_b32 v{vVA[0]}, v{vVC[0]}")
    a.e(f"v_mov_b32 v{vVA[1]}, v{vVC[1]}")
    for e in range(4):
        a.e(f"v_add_u32 v{vKA[e]}, s{sT2}, v{vKC[e]}")
    a.e(f"v_mov_b32 v{vL[0]}, 0")
    a.e(f"v_mov_b32 v{vL[1]}, 0")
    a.e(f"v_and_b32 v13, 3, v{vLANE}")
    a.e(f"v_bfe_u32 v14, v{vLANE}, 4, 1")
    a.e("v_cmp_eq_u32 vcc, v13, v14")
    a.e("v_mov_b32 v13, 0x3f803f80")
    a.e("s_nop 1")
    for i in range(4):
        a.e(f"v_cndmask_b32 v{vONES+i}, 0, v13, vcc")
        a.e(f"v_mov_b32 v{vLA+i}, 0")
    for i in range(64):
        a.e(f"v_mov_b32 v{vO+i}, 0")
    a.e(f"s_mov_b32 s{sKB}, 1")
    a.e(f"s_mov_b32 s{sVB}, 0")
    a.e(f"s_mov_b32 s{sLOOP}, {(-15) & 0xffffffff:#x}")
    lg = LG()
    a.pstamp(3)
    a.e("s_waitcnt vmcnt(4)")
    for s in range(4):
        kread(a, lg, s, 0, dst=vQ)
    for s in range(4):
        lg.need(a, [("K", s)])
        scale_q(a, vQ + 4 * s, 4, [13, 14, 15, 2])
    a.e("s_waitcnt vmcnt(0)")
    for s in range(4, 8):
        kread(a, lg, s, 0, dst=vQ)
    a.e("s_waitcnt lgkmcnt(0)")
    lg.done = lg.n
    a.stamp(2)
    a.pstamp(4)
    if DBG: a.e("s_waitcnt lgkmcnt(0)")
    a.e("s_barrier")
    a.pstamp(5)
    for s in range(8):
        kread(a, lg, s, 0, addr=vKC)
    scale_q(a, vQ + 16, 4, [13, 14, 15, 2])
    for s in range(8):
        lg.need(a, [("K", s)])
        mfma32(a, vS[0], vK + 4 * s, vQ + 4 * s, "0" if s == 0 else vS[0])
        if s < 3:
            scale_q(a, vQ + 4 * (s + 5), 4, [13, 14, 15, 2])
            a.e("s_nop 1")
    a.e("s_barrier")
    for s in range(8):
        kread(a, lg, s, 8192, addr=vKC)
    for n in range(7):
        vread(a, lg, 0, n, 0)
    for e in range(4):
        a.e(f"v_add_u32 v{vKA[e]}, 0x4000, v{vKC[e]}")
    S = vS[0]
    a.e(f"v_max3_f32 v13, v{S}, v{S+1}, v{S+2}")
    a.e(f"v_max3_f32 v14, v{S+3}, v{S+4}, v{S+5}")
    a.e(f"v_max3_f32 v13, v13, v{S+6}, v{S+7}")
    a.e(f"v_max3_f32 v14, v14, v{S+8}, v{S+9}")
    a.e(f"v_max3_f32 v13, v13, v{S+10}, v{S+11}")
    a.e(f"v_max3_f32 v14, v14, v{S+12}, v{S+13}")
    a.e(f"v_max3_f32 v13, v13, v{S+14}, v{S+15}")
    a.e("v_max_f32 v13, v13, v14")
    a.e("v_mov_b32 v14, v13")
    a.e("s_nop 1")
    a.e("v_permlane32_swap_b32 v13, v14")
    a.e("v_max_f32 v13, v13, v14")
    for i in range(16):
        a.e(f"v_sub_f32 v{S+i}, v{S+i}, v13")
    for i in range(16):
        a.e(f"v_sub_f32 v{vNEGM+i}, 0, v13")
    for e in range(6):
        E(a, 0, e)
        if e >= 1: Ad(a, 0, e - 1)
        else: a.e("s_nop 0")
        if e >= 2 and e % 2 == 0: Cv(a, 0, (e - 2) // 2)
    a.stamp(3)
    a.e("s_waitcnt lgkmcnt(0)")
    ex0 = {2: [f"v_lshl_add_u32 v{vKA[3]}, s{sKB}, 14, v{vKC[3]}"]}
    ex1 = {2: [f"s_add_u32 s{sLOOP}, s{sLOOP}, 1"],
           6: [f"v_lshl_add_u32 v{vVA[0]}, s{sKB}, 14, v{vVC[0]}"],
           8: [f"v_lshl_add_u32 v{vVA[1]}, s{sKB}, 14, v{vVC[1]}", f"s_add_u32 s{sKB}, s{sKB}, 1"],
           9: [f"s_and_b32 s{sKB}, s{sKB}, 3"],
           10: [f"v_lshl_add_u32 v{vKA[0]}, s{sKB}, 14, v{vKC[0]}"],
           11: [f"v_lshl_add_u32 v{vKA[1]}, s{sKB}, 14, v{vKC[1]}"],
           14: [f"v_lshl_add_u32 v{vKA[2]}, s{sKB}, 14, v{vKC[2]}", f"s_cmp_eq_u32 s{sLOOP}, 0"]}
    dry = A(); lg = LG(); lg.inloop = True
    for s_ in range(8): lg.issue(("K", s_))
    for n in range(7): lg.issue(("V", 0, n))
    lg.done = lg.n
    slot(dry, lg, 0); slot(dry, lg, 1)
    st0 = (lg.n - lg.done)
    SK = int(OPT.get("skew", "0"))
    ncopy = 4 if SK else 1
    import copy
    if ncopy > 1:
        for w in range(1, 4):
            a.e(f"s_cmp_eq_u32 s{sWAVE}, {w}")
            a.e(f"s_cbranch_scc1 L_main_loop{w}")
    lg0 = lg
    for w in range(ncopy):
        lg = copy.deepcopy(lg0)
        sk = [f"s_nop {w*SK//4 - 1}"] if w * SK >= 4 else []
        e0 = dict(ex0); e1 = dict(ex1); e2 = {}
        e0[0] = sk; e1[0] = sk; e2[0] = sk
        a.l.append(".p2align 6")
        a.lab(f"L_main_loop{w}")
        slot(a, lg, 0, extra=e0)
        slot(a, lg, 1, extra=e1)
        assert (lg.n - lg.done) == st0, (lg.n - lg.done, st0)
        a.e(f"s_cbranch_scc0 L_main_loop{w}")
        slot(a, lg, 0, kr=False, extra=e2)
        if w < ncopy - 1 or True:
            pass
        if ncopy > 1 and w < ncopy - 1:
            a.e("s_branch L_main_last")
    a.lab("L_main_last")
    if "oldtail" in FLAGS:
        slot(a, lg, 1, qk=False, kr=False, vnext=False, bar=False, smn=False)
        a.stamp(4); a.stamp(5)
        a.e(f"v_and_b32 v14, 16, v{vLANE}")
        a.e("v_cmp_eq_u32 vcc, 0, v14")
        a.e("s_nop 4")
        a.e(f"v_cndmask_b32 v13, v{vLA+1}, v{vLA}, vcc")
        a.e(f"v_cmp_nlt_f32 vcc, v13, s{sTHR}")
        a.e("v_rcp_f32 v15, v13")
        a.e(f"s_lshl_b32 s{sROW0}, s{sWAVE}, 5")
        a.e(f"s_lshl_b32 s{sPRIV}, s{sWAVE}, 13")
        a.e("s_mov_b64 s[56:57], -1")
        a.e("s_cbranch_vccnz L_slow")
        a.e("s_nop 3")
        store_out(a, stb)
    else:
        cur = 1
        for n in range(7, 16):
            vread(a, lg, cur, n, cur * 8192)
        a.e(f"v_and_b32 v14, 16, v{vLANE}")
        a.e("v_cmp_eq_u32 s[60:61], 0, v14" if not DBG else "v_cmp_eq_u32 s[76:77], 0, v14")
        msk = "s[60:61]" if not DBG else "s[76:77]"
        E(a, cur, 6); E(a, cur, 7); Cv(a, cur, 2)
        E(a, cur, 8); Cv(a, cur, 3)
        order0 = [(0, t) for t in range(4)]
        ee = 9
        a.e("s_nop 1")
        mfma16(a, vLA, vONES, vP[cur], vLA)
        for (ks, t) in order0:
            f = ks * 4 + t
            lg.need(a, [("V", cur, 2 * f + 1)])
            mfma32(a, vO + 16 * t, vV + 4 * f, vP[cur] + 4 * ks, vO + 16 * t)
            for _ in range(2):
                if ee <= 15:
                    E(a, cur, ee)
                    if ee % 2 == 0: Cv(a, cur, (ee - 2) // 2)
                    ee += 1
        a.e("s_nop 0")
        Cv(a, cur, 7)
        a.e(f"s_lshl_b32 s{sROW0}, s{sWAVE}, 5")
        a.e(f"s_lshl_b32 s{sPRIV}, s{sWAVE}, 13")
        mfma16(a, vLA, vONES, vP[cur] + 4, vLA)
        for t in range(4):
            f = 4 + t
            lg.need(a, [("V", cur, 2 * f + 1)])
            mfma32(a, vO + 16 * t, vV + 4 * f, vP[cur] + 4, vO + 16 * t)
            if t == 1:
                a.e("s_mov_b64 s[56:57], -1")
                a.e("s_nop 3")
                a.e(f"v_cndmask_b32 v13, v{vLA+1}, v{vLA}, {msk}")
                a.e(f"v_cmp_nlt_f32 vcc, v13, s{sTHR}")
                a.e("v_rcp_f32 v15, v13")
        a.stamp(4); a.stamp(5)
        a.e("s_cbranch_vccnz L_slow")
        if "ldsout" in FLAGS:
            store_out_lds(a, stb)
        else:
            a.e("s_nop 4")
            store_out(a, stb)
    a.dump()
    a.e("s_endpgm")

    hD = [4, 5, 243, 244]; hKC = [6, 7]; hVC = [8, 9]; hKA = [11, 12]; hVA = [240, 241, 245, 246]; hL = 10
    hQ = 16; hNEGM = 32; hS = [36, 40]; hP = 44; hK = 48; hV = 80; hO = 112; hX = 144
    a.lab("L_helper")
    a.e("s_setprio 2")
    a.e(f"s_sub_u32 s{sH}, s{sWAVE}, 4")
    a.e(f"s_lshr_b32 s{sT0}, s{sH}, 1")
    a.e(f"s_and_b32 s{sT1}, s{sH}, 1")
    a.e(f"s_lshl_b32 s{sT2}, s{sT0}, 13")
    a.e(f"s_lshl_b32 s{sT3}, s{sT1}, 11")
    a.e(f"s_add_u32 s{sT2}, s{sT2}, s{sT3}")
    a.e(f"s_add_u32 s{sQ9}, s{sT2}, {6*8192:#x}")
    a.e(f"s_add_u32 s{sT2}, s{sQOFF}, 0x8000")
    for p in range(4):
        hf = p >> 1; rg = p & 1
        a.e(f"s_add_u32 m0, s{sQ9}, {hf*4096 + rg*1024}")
        a.e(f"s_add_u32 s{sT3}, s{sT2}, {rg*2048 + hf*128}")
        a.e(f"buffer_load_dwordx4 v{14+rg}, s[{sQSRD}:{sQSRD+3}], s{sT3} offen{qb} lds")
    a.e(f"s_cmp_eq_u32 s{sT0}, 1")
    a.e(f"s_cselect_b32 s{sDSRD}, s{sVSRD}, s{sKSRD}")
    a.e(f"s_cselect_b32 s{sDSRD+1}, s{sVSRD+1}, s{sKSRD+1}")
    a.e("s_cbranch_scc1 L_h_vpat")
    a.e(f"v_mov_b32 v{hD[0]}, v14")
    a.e(f"v_add_u32 v{hD[1]}, 1024, v15")
    a.e("s_branch L_h_patdone")
    a.lab("L_h_vpat")
    a.e(f"v_bfe_u32 v2, v{vLANE}, 4, 1")
    a.e("v_lshlrev_b32 v2, 2, v2")
    a.e(f"v_lshrrev_b32 v3, 5, v{vLANE}")
    a.e("v_lshl_add_u32 v2, v3, 1, v2")
    a.e(f"v_and_b32 v3, 7, v{vLANE}")
    a.e("v_xor_b32 v2, v2, v3")
    a.e("v_lshlrev_b32 v2, 4, v2")
    a.e(f"v_lshrrev_b32 v3, 3, v{vLANE}")
    a.e(f"v_lshl_add_u32 v{hD[0]}, v3, 8, v2")
    a.e(f"v_add_u32 v{hD[1]}, 1024, v{hD[0]}")
    a.lab("L_h_patdone")
    a.e(f"v_add_u32 v{hD[2]}, 2048, v{hD[0]}")
    a.e(f"v_add_u32 v{hD[3]}, 2048, v{hD[1]}")
    a.e(f"s_add_u32 s{sDSRD}, s{sDSRD}, s{sKVOFF}")
    a.e(f"s_addc_u32 s{sDSRD+1}, s{sDSRD+1}, 0")
    a.e(f"s_mov_b32 s{sDSRD+2}, 262144")
    a.e(f"s_mov_b32 s{sDSRD+3}, 0x20000")
    a.e(f"s_sub_u32 s{sOFF}, 1, s{sT0}")
    a.e(f"s_lshl_b32 s{sLDSB}, s{sT0}, 16")
    a.e(f"s_lshl_b32 s{sT0}, s{sT1}, 12")
    a.e(f"s_add_u32 s{sLDSB}, s{sLDSB}, s{sT0}")
    a.e(f"s_lshl_b32 s{sGB}, s{sT1}, 7")
    a.e(f"s_mov_b32 s{sNEXT}, 0")
    a.e(f"s_mov_b32 s{sSINK}, {SINK:#x}")

    def issue():
        a.e(f"s_and_b32 s{sT0}, s{sNEXT}, 0xffff")
        a.e(f"s_add_u32 s{sT0}, s{sT0}, s{sLDSB}")
        a.e(f"s_cmp_lt_u32 s{sNEXT}, 0x40000")
        a.e(f"s_cselect_b32 m0, s{sT0}, s{sSINK}")
        if OPT["order"] == "lock":
            a.e(f"s_add_u32 s{sT1}, s{sNEXT}, s{sGB}")
        else:
            msk = {"rot4": 3, "rot8": 7}[OPT["order"]] << 13
            a.e(f"s_add_u32 s{sT1}, s{sNEXT}, s{sROT}")
            a.e(f"s_and_b32 s{sT1}, s{sT1}, {msk:#x}")
            a.e(f"s_andn2_b32 s{sT2}, s{sNEXT}, {msk:#x}")
            a.e(f"s_or_b32 s{sT1}, s{sT1}, s{sT2}")
            a.e(f"s_add_u32 s{sT1}, s{sT1}, s{sGB}")
        for rg in range(4):
            a.e(f"buffer_load_dwordx4 v{hD[rg]}, s[{sDSRD}:{sDSRD+3}], s{sT1} offen offset:{rg*1024}{kvb} lds")
        a.e(f"s_add_u32 s{sNEXT}, s{sNEXT}, 0x2000")

    a.e(f"s_lshl_b32 s{sROT}, s{sMEM}, {14 if OPT['order']=='rot8' else 13}")
    a.e(f"s_lshl_b32 s{sT3}, s{sOFF}, 13")
    a.lab("L_h_init")
    issue()
    a.e(f"s_cmp_le_u32 s{sNEXT}, s{sT3}")
    a.e("s_cbranch_scc1 L_h_init")
    if "hp0" in FLAGS: a.e("s_setprio 0")
    a.e(f"v_and_b32 v2, 15, v{vLANE}")
    a.e(f"v_lshrrev_b32 v3, 4, v{vLANE}")
    a.e("v_lshrrev_b32 v13, 1, v2")
    a.e("v_xor_b32 v13, v13, v3")
    a.e("v_lshlrev_b32 v13, 4, v13")
    a.e(f"v_lshl_add_u32 v{hKC[0]}, v2, 7, v13")
    a.e(f"v_xor_b32 v{hKC[1]}, 64, v{hKC[0]}")
    a.e(f"v_bfe_u32 v13, v{vLANE}, 2, 2")
    a.e("v_lshl_add_u32 v14, v3, 2, v13")
    a.e("v_lshlrev_b32 v14, 7, v14")
    a.e("v_lshrrev_b32 v13, 1, v13")
    a.e("v_lshl_add_u32 v14, v13, 6, v14")
    a.e(f"v_and_b32 v13, 3, v{vLANE}")
    a.e("v_lshl_add_u32 v14, v13, 3, v14")
    a.e("v_and_b32 v13, 1, v3")
    a.e("v_lshl_add_u32 v14, v13, 5, v14")
    a.e(f"v_add_u32 v{hVC[0]}, {VRING:#x}, v14")
    a.e(f"v_mov_b32 v{hL}, 0")
    for i in range(32):
        a.e(f"v_mov_b32 v{hO+i}, 0")
    a.e(f"v_mov_b32 v13, {CNT:#x}")
    a.e("v_mov_b32 v14, 0")
    a.e("ds_write_b32 v13, v14")
    a.e(f"s_lshl_b32 s{sBS}, s{sH}, 13")
    a.stamp(2)

    def h_kreads(addr, off=0, us=(0, 1), dst=hK):
        for u in us:
            for s in range(4):
                a.e(f"ds_read_b128 {vr(dst+(u*4+s)*4,4)}, v{addr[s&1]} offset:{off+(s>>1)*4096+u*2048}")

    a.pstamp(3)
    a.e(f"v_add_u32 v{hKA[0]}, s{sQ9}, v{hKC[0]}")
    a.e(f"v_add_u32 v{hKA[1]}, s{sQ9}, v{hKC[1]}")
    a.e(f"s_cmp_eq_u32 s{sOFF}, 1")
    a.e("s_cbranch_scc1 L_h_q9k")
    a.e("s_waitcnt vmcnt(4)")
    a.lab("L_h_q9k")
    a.e("s_waitcnt vmcnt(8)")
    h_kreads(hKA, us=(0,), dst=hQ)
    a.e("s_waitcnt lgkmcnt(0)")
    a.e("s_setprio 0")
    scale_q(a, hQ, 16, [13, 14, 15, 242])
    a.e("s_setprio 2")
    a.e("s_waitcnt vmcnt(4) lgkmcnt(0)")
    a.pstamp(4)
    a.e("s_barrier")
    issue(); issue()
    a.pstamp(5)
    h_kreads(hKC)
    a.e("s_waitcnt vmcnt(8) lgkmcnt(0)")
    a.e("s_barrier")
    issue(); issue()
    for u in range(2):
        for s in range(4):
            mfma16(a, hS[u], hK + (u * 4 + s) * 4, hQ + 4 * s, "0" if s == 0 else hS[u])
    a.e("s_nop 7")
    a.e("s_nop 1")
    a.e(f"v_max3_f32 v13, v{hS[0]}, v{hS[0]+1}, v{hS[0]+2}")
    a.e(f"v_max3_f32 v13, v13, v{hS[0]+3}, v{hS[1]}")
    a.e(f"v_max3_f32 v13, v13, v{hS[1]+1}, v{hS[1]+2}")
    a.e(f"v_max_f32 v13, v13, v{hS[1]+3}")
    a.e("v_mov_b32 v14, v13")
    a.e("s_nop 1")
    a.e("v_permlane32_swap_b32 v13, v14")
    a.e("v_max_f32 v13, v13, v14")
    a.e("v_mov_b32 v14, v13")
    a.e("s_nop 1")
    a.e("v_permlane16_swap_b32 v13, v14")
    a.e("v_max_f32 v13, v13, v14")
    for i in range(4):
        a.e(f"v_sub_f32 v{hNEGM+i}, 0, v13")
    a.stamp(3)
    a.e(f"s_mov_b32 s{sN}, 31")
    cnt = [0]
    ool = []
    def sync():
        cnt[0] += 1
        tag = cnt[0]
        a.e(f"s_sub_u32 s{sN}, s{sN}, 1")
        a.e(f"s_cmp_ge_u32 s{sN}, 29")
        a.e(f"s_cbranch_scc1 L_sk_{tag}")
        a.e("s_waitcnt vmcnt(20) lgkmcnt(0)")
        if "nobar" not in FLAGS: a.e("s_barrier")
        a.lab(f"L_si_{tag}")
        if "nodma" not in FLAGS: issue()
        a.lab(f"L_sd_{tag}")
        ool.append(tag)
    a.e(f"s_mov_b32 s{sK}, s{sH}")
    a.lab("L_h_pre")
    a.e(f"s_sub_u32 s{sK}, s{sK}, 1")
    a.e("s_cbranch_scc1 L_h_go")
    sync()
    a.e("s_branch L_h_pre")
    a.lab("L_h_go")
    a.e(f"s_mov_b32 s{sK}, {(-7) & 0xffffffff:#x}")
    def h_sm(u):
        S_ = hS[u]
        for i in range(4):
            a.e(f"v_exp_f32 v{S_+i}, v{S_+i}")
        a.e("s_nop 0")
        for i in range(4):
            a.e(f"v_add_f32 v{hL}, v{hL}, v{S_+i}")
        a.e(f"v_cvt_pk_bf16_f32 v{hP+2*u}, v{S_}, v{S_+1}")
        a.e(f"v_cvt_pk_bf16_f32 v{hP+2*u+1}, v{S_+2}, v{S_+3}")
    a.l.append(".p2align 6")
    a.lab("L_h_loop")
    nh = "nohelp" in FLAGS
    dpst = {"on": "nodp" not in FLAGS}
    def hi():
        if dpst["on"]: a.e("s_setprio 2")
    def lo():
        if dpst["on"]: a.e("s_setprio 0")
    def phases():
        if not nh:
            lo()
            for e in range(2):
                a.e(f"v_add_u32 v{hKA[e]}, s{sBS}, v{hKC[e]}")
            a.e(f"v_add_u32 v{hVA[0]}, s{sBS}, v{hVC[0]}")
            for e in range(1, 4):
                a.e(f"v_xor_b32 v{hVA[e]}, {32*e}, v{hVA[0]}")
            a.e(f"s_add_u32 s{sBS}, s{sBS}, 0x8000")
            a.e(f"s_and_b32 s{sBS}, s{sBS}, 0xffff")
            h_kreads(hKA)
            a.e("s_waitcnt lgkmcnt(4)")
            hi()
            for s in range(4):
                mfma16(a, hS[0], hK + s * 4, hQ + 4 * s, hNEGM if s == 0 else hS[0])
            lo()
            for t16 in range(4):
                for u in range(2):
                    a.e(f"ds_read_b64_tr_b16 {vr(hV+4*t16+2*u,2)}, v{hVA[t16&3]} offset:{(t16>>2)*4096+u*2048}")
            hi()
        sync()
        if not nh:
            for s in range(4):
                mfma16(a, hS[1], hK + (4 + s) * 4, hQ + 4 * s, hNEGM if s == 0 else hS[1])
            lo()
            for t16 in range(4, 8):
                for u in range(2):
                    a.e(f"ds_read_b64_tr_b16 {vr(hV+4*t16+2*u,2)}, v{hVA[t16&3]} offset:{(t16>>2)*4096+u*2048}")
            h_sm(0)
            hi()
        sync()
        if not nh:
            lo()
            h_sm(1)
            hi()
            a.e("s_nop 1")
            for t16 in range(4):
                mfma16(a, hO + 4 * t16, hV + 4 * t16, hP, hO + 4 * t16)
        sync()
        if not nh:
            for t16 in range(4, 8):
                mfma16(a, hO + 4 * t16, hV + 4 * t16, hP, hO + 4 * t16)
        sync()
    phases()
    a.e(f"s_add_u32 s{sK}, s{sK}, 1")
    a.e("s_cbranch_scc0 L_h_loop")
    dpst["on"] = "tailhi" not in FLAGS
    phases()
    a.e("s_branch L_h_fin")
    for tag in ool:
        a.lab(f"L_sk_{tag}")
        a.e(f"s_cmp_gt_u32 s{sN}, 30")
        a.e(f"s_cbranch_scc1 L_st_{tag}")
        a.e(f"s_cmp_eq_u32 s{sN}, 29")
        a.e(f"s_cbranch_scc1 L_sr_{tag}")
        a.e("s_waitcnt vmcnt(12)")
        a.lab(f"L_sr_{tag}")
        a.e("s_waitcnt vmcnt(16) lgkmcnt(0)")
        if "nobar" not in FLAGS: a.e("s_barrier")
        issue()
        a.e(f"s_branch L_si_{tag}")
        a.lab(f"L_st_{tag}")
        a.e(f"s_mov_b32 s{sN}, 0")
        a.e("s_waitcnt lgkmcnt(0)")
        a.e("s_nop 7")
        a.e(f"s_branch L_sd_{tag}")
    a.lab("L_h_fin")
    a.stamp(4)
    a.e(f"v_mov_b32 v14, v{hL}")
    a.e("s_nop 1")
    a.e(f"v_permlane32_swap_b32 v{hL}, v14")
    a.e(f"v_add_f32 v{hL}, v{hL}, v14")
    a.e(f"v_mov_b32 v14, v{hL}")
    a.e("s_nop 1")
    a.e(f"v_permlane16_swap_b32 v{hL}, v14")
    a.e(f"v_add_f32 v{hL}, v{hL}, v14")
    a.e(f"s_lshl_b32 s{sT0}, s{sH}, 13")
    a.e(f"s_add_u32 s{sT0}, s{sT0}, {CAREA:#x}")
    a.e(f"v_lshlrev_b32 v13, 4, v{vLANE}")
    a.e(f"v_add_u32 v14, s{sT0}, v13")
    a.e("s_nop 4")
    for t16 in range(8):
        a.e(f"ds_write_b128 v14, {vr(hO+4*t16,4)} offset:{t16*1024}")
    a.e(f"s_lshl_b32 s{sT0}, s{sH}, 8")
    a.e(f"s_add_u32 s{sT0}, s{sT0}, {LAREA:#x}")
    a.e(f"v_lshlrev_b32 v15, 2, v{vLANE}")
    a.e(f"v_add_u32 v14, s{sT0}, v15")
    a.e(f"ds_write_b32 v14, v{hL}")
    a.e("s_waitcnt lgkmcnt(0)")
    a.e(f"v_mov_b32 v14, {CNT:#x}")
    a.e("v_mov_b32 v12, 1")
    a.e("s_mov_b64 exec, 1")
    a.e("ds_add_u32 v14, v12")
    a.e("s_mov_b64 exec, -1")
    a.e("s_setprio 0")
    a.lab("L_h_spin")
    a.e("s_sleep 1")
    a.e("ds_read_b32 v12, v14")
    a.e("s_waitcnt lgkmcnt(0)")
    a.e(f"v_readfirstlane_b32 s{sT0}, v12")
    a.e("s_nop 3")
    a.e(f"s_cmp_lt_u32 s{sT0}, 4")
    a.e("s_cbranch_scc1 L_h_spin")
    a.e("s_setprio 2")
    a.stamp(5)
    a.e(f"s_lshl_b32 s{sT0}, s{sH}, 11")
    a.e(f"s_add_u32 s{sT0}, s{sT0}, {CAREA:#x}")
    a.e(f"v_add_u32 v14, s{sT0}, v13")
    for x in range(4):
        for k in range(2):
            a.e(f"ds_read_b128 {vr(hX+(x*2+k)*4,4)}, v14 offset:{x*8192+k*1024}")
    a.e(f"v_add_u32 v14, {LAREA:#x}, v15")
    for x in range(4):
        a.e(f"ds_read_b32 v{hK+x}, v14 offset:{x*256}")
    a.e("s_waitcnt lgkmcnt(0)")
    a.e(f"v_add_f32 v13, v{hK}, v{hK+1}")
    a.e(f"v_add_f32 v14, v{hK+2}, v{hK+3}")
    a.e("v_add_f32 v13, v13, v14")
    a.e(f"v_cmp_nlt_f32 vcc, v13, s{sTHR}")
    a.e("v_rcp_f32 v15, v13")
    a.e("s_nop 3")
    a.e("s_cbranch_vccnz L_h_bad")
    for k in range(2):
        for i in range(4):
            r0 = hX + k * 4 + i
            a.e(f"v_add_f32 v{r0}, v{r0}, v{r0+8}")
            a.e(f"v_add_f32 v{r0+16}, v{r0+16}, v{r0+24}")
            a.e(f"v_add_f32 v{r0}, v{r0}, v{r0+16}")
            a.e(f"v_mul_f32 v{r0}, v{r0}, v15")
    for k in range(2):
        r0 = hX + k * 4
        a.e(f"v_cvt_pk_bf16_f32 v{hK+8+2*k}, v{r0}, v{r0+1}")
        a.e(f"v_cvt_pk_bf16_f32 v{hK+8+2*k+1}, v{r0+2}, v{r0+3}")
    a.e(f"v_lshlrev_b32 v14, 8, v2")
    a.e(f"v_lshl_add_u32 v14, v3, 3, v14")
    a.e(f"s_lshl_b32 s{sT0}, s{sH}, 6")
    a.e(f"s_add_u32 s{sT0}, s{sT0}, 0x8000")
    a.e(f"v_add_u32 v14, s{sT0}, v14")
    for k in range(2):
        a.e(f"buffer_store_dwordx2 {vr(hK+8+2*k,2)}, v14, s[{sOSRD}:{sOSRD+3}], s{sQOFF} offen offset:{32*k}{stb}")
    a.dump()
    a.lab("L_end")
    a.e("s_endpgm")
    a.lab("L_h_bad")
    a.e(f"s_cmp_lg_u32 s{sH}, 0")
    a.e("s_cbranch_scc1 L_end")
    a.e(f"s_mov_b32 s{sROW0}, 128")
    a.e(f"s_mov_b32 s{sPRIV}, {4*8192}")
    a.e("s_mov_b32 s56, 0x0000ffff")
    a.e("s_mov_b32 s57, 0x0000ffff")
    a.lab("L_slow")
    a.e("s_waitcnt vmcnt(0) lgkmcnt(0)")
    a.e("s_nop 7")
    a.e("s_nop 7")
    a.e(f"v_and_b32 v2, 31, v{vLANE}")
    a.e(f"v_lshrrev_b32 v3, 5, v{vLANE}")
    a.e(f"v_lshlrev_b32 v4, 8, v2")
    a.e(f"v_lshl_add_u32 v4, v3, 4, v4")
    a.e(f"s_lshl_b32 s{sT0}, s{sROW0}, 8")
    a.e(f"v_add_u32 v{vQO}, s{sT0}, v4")
    for s in range(8):
        a.e(f"buffer_load_dwordx4 {vr(vQ+4*s,4)}, v{vQO}, s[{sQSRD}:{sQSRD+3}], s{sQOFF} offen offset:{32*s}")
    a.e(f"v_bfe_u32 v13, v{vLANE}, 4, 1")
    a.e("v_lshlrev_b32 v13, 2, v13")
    a.e("v_lshl_add_u32 v13, v3, 1, v13")
    a.e(f"v_and_b32 v14, 7, v{vLANE}")
    a.e("v_xor_b32 v13, v13, v14")
    a.e("v_lshlrev_b32 v13, 4, v13")
    a.e(f"v_lshrrev_b32 v14, 3, v{vLANE}")
    a.e("v_lshl_add_u32 v5, v14, 8, v13")
    a.e(f"v_bfe_u32 v13, v{vLANE}, 2, 2")
    a.e("v_lshl_add_u32 v14, v3, 2, v13")
    a.e("v_lshlrev_b32 v14, 7, v14")
    a.e("v_lshrrev_b32 v13, 1, v13")
    a.e("v_lshl_add_u32 v14, v13, 6, v14")
    a.e(f"v_bfe_u32 v13, v{vLANE}, 4, 1")
    a.e("v_xor_b32 v13, v13, v3")
    a.e("v_lshl_add_u32 v14, v13, 5, v14")
    a.e(f"v_and_b32 v13, 3, v{vLANE}")
    a.e("v_lshl_add_u32 v14, v13, 3, v14")
    a.e(f"v_add_u32 v{vVA[0]}, s{sPRIV}, v14")
    a.e(f"v_xor_b32 v{vVA[1]}, 64, v{vVA[0]}")
    a.e("s_waitcnt vmcnt(0)")
    scale_q(a, vQ, 32, [13, 14, 15, 2])
    a.e("v_mov_b32 v6, 0xff800000")
    a.e(f"s_mov_b32 s{sT1}, s{sKVOFF}")
    a.e(f"s_mov_b32 s{sN}, 0")
    def sl_qk(c0):
        for s in range(8):
            a.e(f"buffer_load_dwordx4 {vr(vK+4*s,4)}, v4, s[{sKSRD}:{sKSRD+3}], s{sT1} offen offset:{32*s}")
        a.e("s_waitcnt vmcnt(0)")
        for s in range(8):
            mfma32(a, vS[0], vK + 4 * s, vQ + 4 * s, c0 if s == 0 else vS[0])
        a.e("s_nop 7")
        a.e("s_nop 7")
    a.lab("L_slow_p1")
    sl_qk("0")
    for i in range(0, 16, 2):
        a.e(f"v_max3_f32 v6, v6, v{vS[0]+i}, v{vS[0]+i+1}")
    a.e(f"s_add_u32 s{sT1}, s{sT1}, 0x2000")
    a.e(f"s_add_u32 s{sN}, s{sN}, 1")
    a.e(f"s_cmp_lt_u32 s{sN}, 32")
    a.e("s_cbranch_scc1 L_slow_p1")
    a.e("v_mov_b32 v14, v6")
    a.e("s_nop 1")
    a.e("v_permlane32_swap_b32 v6, v14")
    a.e("v_max_f32 v6, v6, v14")
    for i in range(16):
        a.e(f"v_sub_f32 v{vNEGM+i}, 0, v6")
    for i in range(64):
        a.e(f"v_mov_b32 v{vO+i}, 0")
    a.e(f"v_mov_b32 v{vL[0]}, 0")
    a.e(f"s_mov_b32 s{sT1}, s{sKVOFF}")
    a.e(f"s_mov_b32 s{sN}, 0")
    a.lab("L_slow_p2")
    for p in range(8):
        hf = p >> 2; rg = p & 3
        a.e(f"s_add_u32 m0, s{sPRIV}, {hf*4096 + rg*1024}")
        a.e(f"s_add_u32 s{sT2}, s{sT1}, {rg*2048 + hf*128}")
        a.e(f"buffer_load_dwordx4 v5, s[{sVSRD}:{sVSRD+3}], s{sT2} offen lds")
    sl_qk(vNEGM)
    lg2 = LG()
    for n in range(16):
        vread(a, lg2, 0, n, 0)
        if n == 7: a.e("s_waitcnt lgkmcnt(0)")
    for e in range(16):
        a.e(f"v_exp_f32 v{vS[0]+e}, v{vS[0]+e}")
    a.e("s_nop 0")
    for e in range(16):
        a.e(f"v_add_f32 v{vL[0]}, v{vL[0]}, v{vS[0]+e}")
    for k in range(8):
        Cv(a, 0, k)
    a.e("s_waitcnt lgkmcnt(0)")
    a.e("s_nop 1")
    for ks in range(2):
        for t in range(4):
            mfma32(a, vO + 16 * t, vV + 4 * (ks * 4 + t), vP[0] + 4 * ks, vO + 16 * t)
    a.e(f"s_add_u32 s{sT1}, s{sT1}, 0x2000")
    a.e(f"s_add_u32 s{sN}, s{sN}, 1")
    a.e(f"s_cmp_lt_u32 s{sN}, 32")
    a.e("s_cbranch_scc1 L_slow_p2")
    a.e(f"v_mov_b32 v14, v{vL[0]}")
    a.e("s_nop 1")
    a.e(f"v_permlane32_swap_b32 v{vL[0]}, v14")
    a.e(f"v_add_f32 v13, v{vL[0]}, v14")
    a.e("v_rcp_f32 v15, v13")
    a.e("s_nop 7")
    a.e("s_nop 7")
    for t in range(4):
        for k in range(2):
            o = vO + 16 * t + 8 * k
            x = vX + 4 * (2 * t + k)
            for i in range(8):
                a.e(f"v_mul_f32 v{o+i}, v{o+i}, v15")
            for i in range(4):
                a.e(f"v_cvt_pk_bf16_f32 v{x+i}, v{o+2*i}, v{o+2*i+1}")
            a.e("s_nop 1")
            a.e(f"v_permlane32_swap_b32 v{x}, v{x+2}")
            a.e(f"v_permlane32_swap_b32 v{x+1}, v{x+3}")
    a.e("s_mov_b64 exec, s[56:57]")
    for t in range(4):
        for k in range(2):
            x = vX + 4 * (2 * t + k)
            a.e(f"buffer_store_dwordx4 {vr(x,4)}, v{vQO}, s[{sOSRD}:{sOSRD+3}], s{sQOFF} offen offset:{64*t+32*k}")
    a.e("s_endpgm")
    a.l.append('.section .rodata,"a"')
    a.l.append(".p2align 6")
    a.l.append(f".amdhsa_kernel {NAME}_kernel")
    a.l.append("  .amdhsa_next_free_vgpr 256")
    a.l.append("  .amdhsa_next_free_sgpr 80")
    a.l.append("  .amdhsa_accum_offset 256")
    a.l.append("  .amdhsa_group_segment_fixed_size 0")
    a.l.append("  .amdhsa_kernarg_size 48")
    a.l.append("  .amdhsa_user_sgpr_count 2")
    a.l.append("  .amdhsa_user_sgpr_kernarg_segment_ptr 1")
    a.l.append("  .amdhsa_system_sgpr_workgroup_id_x 1")
    a.l.append(".end_amdhsa_kernel")
    return a.text()

if __name__ == "__main__":
    out = sys.argv[1] if len(sys.argv) > 1 else OUT
    for x in sys.argv[2:]:
        if x == "dbg": DBG = True
        elif "=" in x:
            k, v = x.split("="); OPT[k] = v.replace("+", " ").replace("none", "")
        else: FLAGS.add(x)
    open(out, "w").write(gen())
    print("wrote", out)
```

```python
import sys, struct, math

NAME = "standalone__gqa_softmax__near_ridge"
OUT = f"cdna_kernels/{NAME}.s"

def f32bits(x):
    return struct.unpack("<I", struct.pack("<f", x))[0]

CSCALE = (128 ** -0.5) * math.log2(math.e)
LTHRESH = 2.0 ** 40

KRING = 0
VRING = 65536
LAREA = 131072
CNT = LAREA + 1024
SINK = LAREA + 2048
LDS_BYTES = SINK + 4096
CAREA = VRING
QST = VRING + 4 * 8192
Q9ST = KRING + 7 * 8192

DBG = False
FLAGS = set()
OPT = {"kv": "nt", "q": "nt", "st": "", "order": "lock"}

sWAVE = 3
class A:
    def __init__(s):
        s.l = []
    def e(s, t):
        s.l.append("  " + t)
    def lab(s, t):
        s.l.append(t + ":")
    def c(s, t):
        s.l.append("  ; " + t)
    def text(s):
        return "\n".join(s.l) + "\n"
    def pstamp(s, i):
        if DBG and "pst" in FLAGS:
            s.e(f"s_memtime s[{60+2*i}:{61+2*i}]")
            s.e("s_waitcnt lgkmcnt(0)")
    def stamp(s, i):
        if DBG and ("pst" not in FLAGS or i == 1):
            s.e(f"s_memtime s[{60+2*i}:{61+2*i}]")
    def rstamp(s, i):
        if DBG:
            s.e(f"s_memrealtime s[{60+2*i}:{61+2*i}]")
    def dump(s):
        if not DBG: return
        s.e("s_load_dwordx2 s[56:57], s[0:1], 40")
        s.e("s_waitcnt vmcnt(0) lgkmcnt(0)")
        s.e("s_memtime s[72:73]")
        s.e("s_memrealtime s[74:75]")
        s.e("s_waitcnt lgkmcnt(0)")
        s.e(f"s_lshl_b32 s58, s2, 3")
        s.e(f"s_add_u32 s58, s58, s{sWAVE}")
        s.e("s_lshl_b32 s58, s58, 5")
        s.e("v_mov_b32 v250, s58")
        s.e("s_mov_b64 exec, 1")
        s.e("v_mov_b32 v251, s60")
        s.e("global_store_dword v250, v251, s[56:57]")
        for i in range(2, 7):
            s.e(f"s_sub_u32 s59, s{60+2*i}, s62")
            s.e("v_mov_b32 v251, s59")
            s.e(f"global_store_dword v250, v251, s[56:57] offset:{4*(i-1)}")
        s.e("v_mov_b32 v251, s74")
        s.e("global_store_dword v250, v251, s[56:57] offset:28")
        s.e("s_waitcnt vmcnt(0)")

def vr(b, n):
    return f"v[{b}:{b+n-1}]"

vLANE = 1
vKA = [4, 5, 6, 7]; vVA = [8, 9]; vKC = [240, 241, 242, 243]; vVC = [244, 245]
vL = [10, 11]; vQO = 12
vQ = 16; vNEGM = 48; vS = [64, 80]; vP = [96, 104]; vK = 112; vV = 144; vO = 176
vX = 112
vONES = 248; vLA = 252

sQSRD = 8; sKSRD = 12; sVSRD = 16; sOSRD = 20; sDSRD = 24
sG = 32; sMEM = 33; sHEAD = 34; sQOFF = 35; sKVOFF = 36; sC = 37; sLOOP = 38; sKB = 39; sVB = 40
sN = 41; sH = 42; sLDSB = 43; sOFF = 44; sNEXT = 45; sT0 = 46; sT1 = 47; sT2 = 48; sTHR = 49
sK = 50; sT3 = 51; sGB = 52; sSINK = 53; sROT = 54; sBS = 55; sROW0 = 58; sPRIV = 59; sQ9 = 56

class LG:
    def __init__(s):
        s.n = 0; s.done = 0; s.tag = {}; s.inloop = False
    def issue(s, tag):
        s.tag[tag] = s.n; s.n += 1
    def need(s, a, tags):
        m = max(s.tag[t] for t in tags)
        if m < s.done:
            return
        cnt = s.n - 1 - m
        assert cnt <= 15, cnt
        if "nowait" in FLAGS and s.inloop: a.e("s_nop 0")
        else: a.e(f"s_waitcnt lgkmcnt({cnt})")
        s.done = m + 1

def mfma32(a, d, A_, B_, c):
    cs = c if isinstance(c, str) else vr(c, 16)
    a.e(f"v_mfma_f32_32x32x16_bf16 {vr(d,16)}, {vr(A_,4)}, {vr(B_,4)}, {cs}")

def mfma16(a, d, A_, B_, c):
    cs = c if isinstance(c, str) else vr(c, 4)
    a.e(f"v_mfma_f32_16x16x32_bf16 {vr(d,4)}, {vr(A_,4)}, {vr(B_,4)}, {cs}")

def kread(a, lg, s, slotoff, addr=None, dst=None):
    ad = (addr or vKA)[s & 3]
    if not (FLAGS & {"nolds", "nok"}) or not lg.inloop:
        a.e(f"ds_read_b128 {vr((dst or vK)+4*s,4)}, v{ad} offset:{slotoff + (s>>2)*4096}")
    lg.issue(("K", s))

def vread(a, lg, tile, n, slotoff):
    f = n >> 1; jj = n & 1
    ks = f >> 2; t = f & 3
    if not (FLAGS & {"nolds", "nov"}) or not lg.inloop:
        a.e(f"ds_read_b64_tr_b16 {vr(vV+4*f+2*jj,2)}, v{vVA[t&1]} offset:{slotoff + (t>>1)*4096 + ks*2048 + jj*1024}")
    lg.issue(("V", tile, n))

def E(a, buf, e):
    if "noexp" not in FLAGS: a.e(f"v_exp_f32 v{vS[buf]+e}, v{vS[buf]+e}")
def Ad(a, buf, e):
    if "valuadd" in FLAGS: a.e(f"v_add_f32 v{vL[e&1]}, v{vL[e&1]}, v{vS[buf]+e}")
def Cv(a, buf, k): a.e(f"v_cvt_pk_bf16_f32 v{vP[buf]+k}, v{vS[buf]+2*k}, v{vS[buf]+2*k+1}")

def slot(a, lg, par, qk=True, kr=True, vnext=True, bar=True, smn=True, extra=None):
    cur = par; nxt = 1 - par
    extra = extra or {}
    for g in range(16):
        W = int(OPT.get("wg", "2"))
        if g < 8:
            if qk and g % W == 0:
                lg.need(a, [("K", g + i) for i in range(W)])
        else:
            if g % W == 0:
                f = g - 8
                lg.need(a, [("V", cur, 2 * (f + i) + 1) for i in range(W)])
        if g < 8:
            if qk:
                mfma32(a, vS[nxt], vK + 4 * g, vQ + 4 * g, vNEGM if g == 0 else vS[nxt])
        else:
            ks = (g - 8) >> 2; t = g & 3
            mfma32(a, vO + 16 * t, vV + 4 * (ks * 4 + t), vP[cur] + 4 * ks, vO + 16 * t)
        if g <= 8:
            vread(a, lg, cur, g + 7, cur * 8192)
        elif vnext:
            vread(a, lg, nxt, g - 9, nxt * 8192)
        if g % 2 == 1 and kr:
            kread(a, lg, (g - 1) // 2, par * 8192)
        if g <= 9:
            e = g + 6
            E(a, cur, e); Ad(a, cur, e - 1)
            if e % 2 == 0: Cv(a, cur, (e - 2) // 2)
        else:
            e = g - 10
            if smn: E(a, nxt, e)
            if e == 0:
                Ad(a, cur, 15); Cv(a, cur, 7)
            elif smn:
                Ad(a, nxt, e - 1)
                if e % 2 == 0: Cv(a, nxt, (e - 2) // 2)
        if "valuadd" not in FLAGS:
            l0, l1 = (int(x) for x in OPT.get("lpos", "4,12").split(","))
            if g == l0: mfma16(a, vLA, vONES, vP[cur], vLA)
            if g == l1: mfma16(a, vLA, vONES, vP[cur] + 4, vLA)
        if g == 0 and bar and "nobar" not in FLAGS:
            a.e("s_barrier")
        for x in extra.get(g, []):
            a.e(x)

def scale_q(a, base, n, t):
    for i in range(0, n, 2):
        r = base + i
        a.e(f"v_lshlrev_b32 v{t[0]}, 16, v{r}")
        a.e(f"v_and_b32 v{t[1]}, 0xffff0000, v{r}")
        a.e(f"v_lshlrev_b32 v{t[2]}, 16, v{r+1}")
        a.e(f"v_and_b32 v{t[3]}, 0xffff0000, v{r+1}")
        for k in range(4):
            a.e(f"v_mul_f32 v{t[k]}, s{sC}, v{t[k]}")
        a.e(f"v_cvt_pk_bf16_f32 v{r}, v{t[0]}, v{t[1]}")
        a.e(f"v_cvt_pk_bf16_f32 v{r+1}, v{t[2]}, v{t[3]}")

def store_out(a, stb):
    for t in range(4):
        for k in range(2):
            o = vO + 16 * t + 8 * k
            x = vX + 4 * (2 * t + k)
            for i in range(8):
                a.e(f"v_mul_f32 v{o+i}, v{o+i}, v15")
            for i in range(4):
                a.e(f"v_cvt_pk_bf16_f32 v{x+i}, v{o+2*i}, v{o+2*i+1}")
            a.e("s_nop 1")
            a.e(f"v_permlane32_swap_b32 v{x}, v{x+2}")
            a.e(f"v_permlane32_swap_b32 v{x+1}, v{x+3}")
            a.e(f"buffer_store_dwordx4 {vr(x,4)}, v{vQO}, s[{sOSRD}:{sOSRD+3}], s{sQOFF} offen offset:{64*t+32*k}{stb}")

def store_out_lds(a, stb):
    a.e(f"v_and_b32 v2, 31, v{vLANE}")
    a.e(f"v_lshrrev_b32 v3, 5, v{vLANE}")
    a.e(f"v_and_b32 v13, 15, v{vLANE}")
    a.e("v_xor_b32 v3, v3, v13")
    a.e("v_lshlrev_b32 v3, 4, v3")
    a.e("v_lshl_add_u32 v3, v2, 8, v3")
    a.e(f"v_add_u32 v3, s{sPRIV}, v3")
    a.e(f"v_lshrrev_b32 v2, 4, v{vLANE}")
    a.e("v_xor_b32 v13, v13, v2")
    a.e("v_lshlrev_b32 v13, 4, v13")
    a.e("v_lshl_add_u32 v13, v2, 8, v13")
    a.e(f"v_add_u32 v4, s{sPRIV}, v13")
    for j in range(1, 4):
        a.e(f"v_xor_b32 v{4+j}, {64*j}, v4")
    a.e(f"v_lshlrev_b32 v8, 4, v{vLANE}")
    a.e(f"s_lshl_b32 s{sT0}, s{sWAVE}, 13")
    a.e(f"s_add_u32 s{sT0}, s{sT0}, s{sQOFF}")
    a.e(f"s_add_u32 s{sT1}, s{sT0}, 4096")
    for t in range(4):
        for k in range(2):
            o = vO + 16 * t + 8 * k
            x = vX + 4 * (2 * t + k)
            for i in range(8):
                a.e(f"v_mul_f32 v{o+i}, v{o+i}, v15")
            for i in range(4):
                a.e(f"v_cvt_pk_bf16_f32 v{x+i}, v{o+2*i}, v{o+2*i+1}")
            a.e(f"v_xor_b32 v14, {(4*t+2*k)*16}, v3")
            a.e("s_nop 0")
            a.e(f"v_permlane32_swap_b32 v{x}, v{x+2}")
            a.e(f"v_permlane32_swap_b32 v{x+1}, v{x+3}")
            a.e(f"ds_write_b128 v14, {vr(x,4)}")
    a.e("s_waitcnt lgkmcnt(0)")
    for j in range(8):
        a.e(f"ds_read_b128 {vr(vV+4*j,4)}, v{4+(j&3)} offset:{j*1024}")
    for j in range(8):
        a.e(f"s_waitcnt lgkmcnt({7-j})")
        a.e(f"buffer_store_dwordx4 {vr(vV+4*j,4)}, v8, s[{sOSRD}:{sOSRD+3}], s{sT0 if j < 4 else sT1} offen offset:{(j&3)*1024}{stb}")

def kpat(a, d0, d1, lane, t0, t1):
    a.e(f"v_lshrrev_b32 v{t0}, 4, v{lane}")
    a.e(f"v_and_b32 v{t1}, 7, v{lane}")
    a.e(f"v_xor_b32 v{t0}, v{t0}, v{t1}")
    a.e(f"v_lshlrev_b32 v{t0}, 4, v{t0}")
    a.e(f"v_lshrrev_b32 v{t1}, 3, v{lane}")
    a.e(f"v_lshl_add_u32 v{d0}, v{t1}, 8, v{t0}")
    a.e(f"v_xor_b32 v{d1}, 64, v{d0}")

def gen():
    a = A()
    kvb = (" " + OPT["kv"]) if OPT["kv"] else ""
    qb = (" " + OPT["q"]) if OPT["q"] else ""
    stb = (" " + OPT["st"]) if OPT["st"] else ""
    hdr = open(f"cdna_kernels/{NAME}.s.ref").read().split("; @launch")[0]
    a.l.append(hdr.rstrip("\n"))
    a.l.append(f"; @launch grid=(256,1,1) block=(512,1,1) lds={LDS_BYTES}")
    a.l.append('.amdgcn_target "amdgcn-amd-amdhsa--gfx950"')
    a.l.append(".text")
    a.l.append(f".globl {NAME}_kernel")
    a.l.append(".p2align 8")
    a.l.append(f".type {NAME}_kernel,@function")
    a.lab(f"{NAME}_kernel")
    a.e("s_cmp_ge_u32 s2, 256")
    a.e("s_cbranch_scc1 L_end")
    a.rstamp(0); a.stamp(1)
    a.e("s_load_dwordx4 s[4:7], s[0:1], 0")
    a.e("s_load_dwordx4 s[28:31], s[0:1], 16")
    a.e("v_lshrrev_b32 v1, 6, v0")
    a.e(f"s_and_b32 s{sG}, s2, 7")
    a.e(f"v_readfirstlane_b32 s{sWAVE}, v1")
    a.e(f"v_and_b32 v{vLANE}, 63, v0")
    a.e(f"s_lshr_b32 s{sMEM}, s2, 5")
    a.e(f"s_lshl_b32 s{sMEM}, s{sMEM}, 3")
    a.e(f"s_add_u32 s{sG}, s{sG}, s{sMEM}")
    a.e(f"s_lshr_b32 s{sMEM}, s2, 3")
    a.e(f"s_and_b32 s{sMEM}, s{sMEM}, 3")
    a.e(f"s_lshl_b32 s{sHEAD}, s{sG}, 2")
    a.e(f"s_add_u32 s{sHEAD}, s{sHEAD}, s{sMEM}")
    a.e(f"s_mul_i32 s{sQOFF}, s{sHEAD}, 36864")
    a.e(f"s_lshl_b32 s{sKVOFF}, s{sG}, 18")
    a.e(f"s_mov_b32 s{sC}, {f32bits(CSCALE):#x}")
    a.e(f"s_mov_b32 s{sTHR}, {f32bits(LTHRESH):#x}")
    kpat(a, 14, 15, vLANE, 2, 3)
    a.e("s_waitcnt lgkmcnt(0)")
    a.pstamp(2)
    for srd, p, nb in ((sQSRD, 4, 9437184), (sKSRD, 6, 16777216), (sVSRD, 28, 16777216), (sOSRD, 30, 9437184)):
        a.e(f"s_mov_b32 s{srd}, s{p}")
        a.e(f"s_and_b32 s{srd+1}, s{p+1}, 0xffff")
        a.e(f"s_mov_b32 s{srd+2}, {nb}")
        a.e(f"s_mov_b32 s{srd+3}, 0x20000")
    a.e(f"s_cmp_ge_u32 s{sWAVE}, 4")
    a.e("s_cbranch_scc1 L_helper")

    a.c("---- main wave ----")
    a.e(f"s_lshl_b32 s{sT0}, s{sWAVE}, 13")
    a.e(f"s_add_u32 s{sT1}, s{sT0}, s{sQOFF}")
    a.e(f"s_add_u32 s{sT2}, s{sT0}, {QST:#x}")
    for p in range(8):
        hf = p >> 2; rg = p & 3
        a.e(f"s_add_u32 m0, s{sT2}, {hf*4096 + rg*1024}")
        a.e(f"s_add_u32 s{sT3}, s{sT1}, {rg*2048 + hf*128}")
        a.e(f"buffer_load_dwordx4 v{14 + (rg&1)}, s[{sQSRD}:{sQSRD+3}], s{sT3} offen{qb} lds")
    if "touch" in FLAGS:
        a.e(f"v_lshlrev_b32 v246, 12, v{vLANE}")
        a.e(f"v_mul_u32_u24 v247, 576, v{vLANE}")
        a.e(f"s_cmp_eq_u32 s{sWAVE}, 1")
        a.e("s_cbranch_scc1 L_tk")
        a.e(f"s_cmp_eq_u32 s{sWAVE}, 2")
        a.e("s_cbranch_scc1 L_tv")
        a.e(f"buffer_load_dword v247, v247, s[{sOSRD}:{sOSRD+3}], s{sQOFF} offen nt")
        a.e("s_branch L_td")
        a.lab("L_tk")
        a.e(f"buffer_load_dword v247, v246, s[{sKSRD}:{sKSRD+3}], s{sKVOFF} offen nt")
        a.e("s_branch L_td")
        a.lab("L_tv")
        a.e(f"buffer_load_dword v247, v246, s[{sVSRD}:{sVSRD+3}], s{sKVOFF} offen nt")
        a.lab("L_td")
    a.e(f"v_and_b32 v2, 31, v{vLANE}")
    a.e(f"v_lshrrev_b32 v3, 5, v{vLANE}")
    a.e(f"v_lshlrev_b32 v{vQO}, 8, v2")
    a.e(f"v_lshl_add_u32 v{vQO}, v3, 4, v{vQO}")
    a.e(f"v_add_u32 v{vQO}, s{sT0}, v{vQO}")
    a.e("v_bfe_u32 v13, v2, 1, 3")
    a.e("v_xor_b32 v13, v13, v3")
    a.e("v_lshlrev_b32 v13, 4, v13")
    a.e(f"v_lshl_add_u32 v{vKC[0]}, v2, 7, v13")
    for e in range(1, 4):
        a.e(f"v_xor_b32 v{vKC[e]}, {32*e}, v{vKC[0]}")
    a.e(f"v_bfe_u32 v13, v{vLANE}, 2, 2")
    a.e("v_lshl_add_u32 v14, v3, 2, v13")
    a.e("v_lshlrev_b32 v14, 7, v14")
    a.e("v_lshrrev_b32 v13, 1, v13")
    a.e("v_lshl_add_u32 v14, v13, 6, v14")
    a.e(f"v_bfe_u32 v13, v{vLANE}, 4, 1")
    a.e("v_xor_b32 v13, v13, v3")
    a.e("v_lshl_add_u32 v14, v13, 5, v14")
    a.e(f"v_and_b32 v13, 3, v{vLANE}")
    a.e(f"v_lshl_add_u32 v14, v13, 3, v14")
    a.e(f"v_add_u32 v{vVC[0]}, {VRING:#x}, v14")
    a.e(f"v_xor_b32 v{vVC[1]}, 64, v{vVC[0]}")
    a.e(f"v_mov_b32 v{vVA[0]}, v{vVC[0]}")
    a.e(f"v_mov_b32 v{vVA[1]}, v{vVC[1]}")
    for e in range(4):
        a.e(f"v_add_u32 v{vKA[e]}, s{sT2}, v{vKC[e]}")
    a.e(f"v_mov_b32 v{vL[0]}, 0")
    a.e(f"v_mov_b32 v{vL[1]}, 0")
    a.e(f"v_and_b32 v13, 3, v{vLANE}")
    a.e(f"v_bfe_u32 v14, v{vLANE}, 4, 1")
    a.e("v_cmp_eq_u32 vcc, v13, v14")
    a.e("v_mov_b32 v13, 0x3f803f80")
    a.e("s_nop 1")
    for i in range(4):
        a.e(f"v_cndmask_b32 v{vONES+i}, 0, v13, vcc")
        a.e(f"v_mov_b32 v{vLA+i}, 0")
    for i in range(64):
        a.e(f"v_mov_b32 v{vO+i}, 0")
    a.e(f"s_mov_b32 s{sKB}, 1")
    a.e(f"s_mov_b32 s{sVB}, 0")
    a.e(f"s_mov_b32 s{sLOOP}, {(-15) & 0xffffffff:#x}")
    lg = LG()
    a.pstamp(3)
    TT = 1 if "touch" in FLAGS else 0
    a.e(f"s_waitcnt vmcnt({4+TT})")
    for s in range(4):
        kread(a, lg, s, 0, dst=vQ)
    for s in range(4):
        lg.need(a, [("K", s)])
        scale_q(a, vQ + 4 * s, 4, [13, 14, 15, 2])
    a.e(f"s_waitcnt vmcnt({TT})")
    for s in range(4, 8):
        kread(a, lg, s, 0, dst=vQ)
    a.e("s_waitcnt lgkmcnt(0)")
    lg.done = lg.n
    a.stamp(2)
    a.pstamp(4)
    if DBG: a.e("s_waitcnt lgkmcnt(0)")
    a.e("s_barrier")
    a.pstamp(5)
    for s in range(8):
        kread(a, lg, s, 0, addr=vKC)
    scale_q(a, vQ + 16, 4, [13, 14, 15, 2])
    for s in range(8):
        lg.need(a, [("K", s)])
        mfma32(a, vS[0], vK + 4 * s, vQ + 4 * s, "0" if s == 0 else vS[0])
        if s < 3:
            scale_q(a, vQ + 4 * (s + 5), 4, [13, 14, 15, 2])
            a.e("s_nop 1")
    a.e("s_barrier")
    for s in range(8):
        kread(a, lg, s, 8192, addr=vKC)
    for n in range(7):
        vread(a, lg, 0, n, 0)
    for e in range(4):
        a.e(f"v_add_u32 v{vKA[e]}, 0x4000, v{vKC[e]}")
    S = vS[0]
    a.e(f"v_max3_f32 v13, v{S}, v{S+1}, v{S+2}")
    a.e(f"v_max3_f32 v14, v{S+3}, v{S+4}, v{S+5}")
    a.e(f"v_max3_f32 v13, v13, v{S+6}, v{S+7}")
    a.e(f"v_max3_f32 v14, v14, v{S+8}, v{S+9}")
    a.e(f"v_max3_f32 v13, v13, v{S+10}, v{S+11}")
    a.e(f"v_max3_f32 v14, v14, v{S+12}, v{S+13}")
    a.e(f"v_max3_f32 v13, v13, v{S+14}, v{S+15}")
    a.e("v_max_f32 v13, v13, v14")
    a.e("v_mov_b32 v14, v13")
    a.e("s_nop 1")
    a.e("v_permlane32_swap_b32 v13, v14")
    a.e("v_max_f32 v13, v13, v14")
    for i in range(16):
        a.e(f"v_sub_f32 v{S+i}, v{S+i}, v13")
    for i in range(16):
        a.e(f"v_sub_f32 v{vNEGM+i}, 0, v13")
    for e in range(6):
        E(a, 0, e)
        if e >= 1: Ad(a, 0, e - 1)
        else: a.e("s_nop 0")
        if e >= 2 and e % 2 == 0: Cv(a, 0, (e - 2) // 2)
    if "touch2" in FLAGS:
        a.e(f"v_and_b32 v246, 3, v{vLANE}")
        a.e("v_lshlrev_b32 v246, 11, v246")
        a.e(f"s_lshl_b32 s{sT0}, s{sWAVE}, 13")
        a.e(f"v_add_u32 v246, s{sT0}, v246")
        a.e(f"v_and_b32 v247, 1, v{vLANE}")
        a.e("v_lshlrev_b32 v247, 11, v247")
        a.e("v_add_u32 v247, 0x8000, v247")
        a.e(f"v_cmp_gt_u32 vcc, 4, v{vLANE}")
        a.e("s_nop 1")
        a.e("v_cndmask_b32 v246, v247, v246, vcc")
        a.e(f"buffer_load_dword v247, v246, s[{sOSRD}:{sOSRD+3}], s{sQOFF} offen nt")
    a.stamp(3)
    a.e("s_waitcnt lgkmcnt(0)")
    ex0 = {2: [f"v_lshl_add_u32 v{vKA[3]}, s{sKB}, 14, v{vKC[3]}"]}
    ex1 = {2: [f"s_add_u32 s{sLOOP}, s{sLOOP}, 1"],
           6: [f"v_lshl_add_u32 v{vVA[0]}, s{sKB}, 14, v{vVC[0]}"],
           8: [f"v_lshl_add_u32 v{vVA[1]}, s{sKB}, 14, v{vVC[1]}", f"s_add_u32 s{sKB}, s{sKB}, 1"],
           9: [f"s_and_b32 s{sKB}, s{sKB}, 3"],
           10: [f"v_lshl_add_u32 v{vKA[0]}, s{sKB}, 14, v{vKC[0]}"],
           11: [f"v_lshl_add_u32 v{vKA[1]}, s{sKB}, 14, v{vKC[1]}"],
           14: [f"v_lshl_add_u32 v{vKA[2]}, s{sKB}, 14, v{vKC[2]}", f"s_cmp_eq_u32 s{sLOOP}, 0"]}
    dry = A(); lg = LG(); lg.inloop = True
    for s_ in range(8): lg.issue(("K", s_))
    for n in range(7): lg.issue(("V", 0, n))
    lg.done = lg.n
    slot(dry, lg, 0); slot(dry, lg, 1)
    st0 = (lg.n - lg.done)
    SK = int(OPT.get("skew", "0"))
    ncopy = 4 if SK else 1
    import copy
    if ncopy > 1:
        for w in range(1, 4):
            a.e(f"s_cmp_eq_u32 s{sWAVE}, {w}")
            a.e(f"s_cbranch_scc1 L_main_loop{w}")
    lg0 = lg
    for w in range(ncopy):
        lg = copy.deepcopy(lg0)
        sk = [f"s_nop {w*SK//4 - 1}"] if w * SK >= 4 else []
        e0 = dict(ex0); e1 = dict(ex1); e2 = {}
        e0[0] = sk; e1[0] = sk; e2[0] = sk
        a.l.append(".p2align 6")
        a.lab(f"L_main_loop{w}")
        slot(a, lg, 0, extra=e0)
        slot(a, lg, 1, extra=e1)
        assert (lg.n - lg.done) == st0, (lg.n - lg.done, st0)
        a.e(f"s_cbranch_scc0 L_main_loop{w}")
        slot(a, lg, 0, kr=False, extra=e2)
        if w < ncopy - 1 or True:
            pass
        if ncopy > 1 and w < ncopy - 1:
            a.e("s_branch L_main_last")
    a.lab("L_main_last")
    if "oldtail" in FLAGS:
        slot(a, lg, 1, qk=False, kr=False, vnext=False, bar=False, smn=False)
        a.stamp(4); a.stamp(5)
        a.e(f"v_and_b32 v14, 16, v{vLANE}")
        a.e("v_cmp_eq_u32 vcc, 0, v14")
        a.e("s_nop 4")
        a.e(f"v_cndmask_b32 v13, v{vLA+1}, v{vLA}, vcc")
        a.e(f"v_cmp_nlt_f32 vcc, v13, s{sTHR}")
        a.e("v_rcp_f32 v15, v13")
        a.e(f"s_lshl_b32 s{sROW0}, s{sWAVE}, 5")
        a.e(f"s_lshl_b32 s{sPRIV}, s{sWAVE}, 13")
        a.e("s_mov_b64 s[56:57], -1")
        a.e("s_cbranch_vccnz L_slow")
        a.e("s_nop 3")
        store_out(a, stb)
    else:
        cur = 1
        for n in range(7, 16):
            vread(a, lg, cur, n, cur * 8192)
        a.e(f"v_and_b32 v14, 16, v{vLANE}")
        a.e("v_cmp_eq_u32 s[60:61], 0, v14" if not DBG else "v_cmp_eq_u32 s[76:77], 0, v14")
        msk = "s[60:61]" if not DBG else "s[76:77]"
        E(a, cur, 6); E(a, cur, 7); Cv(a, cur, 2)
        E(a, cur, 8); Cv(a, cur, 3)
        order0 = [(0, t) for t in range(4)]
        ee = 9
        a.e("s_nop 1")
        mfma16(a, vLA, vONES, vP[cur], vLA)
        for (ks, t) in order0:
            f = ks * 4 + t
            lg.need(a, [("V", cur, 2 * f + 1)])
            mfma32(a, vO + 16 * t, vV + 4 * f, vP[cur] + 4 * ks, vO + 16 * t)
            for _ in range(2):
                if ee <= 15:
                    E(a, cur, ee)
                    if ee % 2 == 0: Cv(a, cur, (ee - 2) // 2)
                    ee += 1
        a.e("s_nop 0")
        Cv(a, cur, 7)
        a.e(f"s_lshl_b32 s{sROW0}, s{sWAVE}, 5")
        a.e(f"s_lshl_b32 s{sPRIV}, s{sWAVE}, 13")
        mfma16(a, vLA, vONES, vP[cur] + 4, vLA)
        for t in range(4):
            f = 4 + t
            lg.need(a, [("V", cur, 2 * f + 1)])
            mfma32(a, vO + 16 * t, vV + 4 * f, vP[cur] + 4, vO + 16 * t)
            if t == 1:
                a.e("s_mov_b64 s[56:57], -1")
                a.e("s_nop 3")
                a.e(f"v_cndmask_b32 v13, v{vLA+1}, v{vLA}, {msk}")
                a.e(f"v_cmp_nlt_f32 vcc, v13, s{sTHR}")
                a.e("v_rcp_f32 v15, v13")
        a.stamp(4); a.stamp(5)
        a.e("s_cbranch_vccnz L_slow")
        if "ldsout" in FLAGS:
            store_out_lds(a, stb)
        else:
            a.e("s_nop 4")
            store_out(a, stb)
    a.dump()
    a.e("s_endpgm")

    hD = [4, 5, 243, 244]; hKC = [6, 7]; hVC = [8, 9]; hKA = [11, 12]; hVA = [240, 241, 245, 246]; hL = 10
    hQ = 16; hNEGM = 32; hS = [36, 40]; hP = 44; hK = 48; hV = 80; hO = 112; hX = 144
    a.lab("L_helper")
    a.e("s_setprio 2")
    a.e(f"s_sub_u32 s{sH}, s{sWAVE}, 4")
    a.e(f"s_lshr_b32 s{sT0}, s{sH}, 1")
    a.e(f"s_and_b32 s{sT1}, s{sH}, 1")
    a.e(f"s_lshl_b32 s{sT2}, s{sT0}, 13")
    a.e(f"s_lshl_b32 s{sT3}, s{sT1}, 11")
    a.e(f"s_add_u32 s{sT2}, s{sT2}, s{sT3}")
    a.e(f"s_add_u32 s{sQ9}, s{sT2}, {6*8192:#x}")
    a.e(f"s_add_u32 s{sT2}, s{sQOFF}, 0x8000")
    for p in range(4):
        hf = p >> 1; rg = p & 1
        a.e(f"s_add_u32 m0, s{sQ9}, {hf*4096 + rg*1024}")
        a.e(f"s_add_u32 s{sT3}, s{sT2}, {rg*2048 + hf*128}")
        a.e(f"buffer_load_dwordx4 v{14+rg}, s[{sQSRD}:{sQSRD+3}], s{sT3} offen{qb} lds")
    a.e(f"s_cmp_eq_u32 s{sT0}, 1")
    a.e(f"s_cselect_b32 s{sDSRD}, s{sVSRD}, s{sKSRD}")
    a.e(f"s_cselect_b32 s{sDSRD+1}, s{sVSRD+1}, s{sKSRD+1}")
    a.e("s_cbranch_scc1 L_h_vpat")
    a.e(f"v_mov_b32 v{hD[0]}, v14")
    a.e(f"v_add_u32 v{hD[1]}, 1024, v15")
    a.e("s_branch L_h_patdone")
    a.lab("L_h_vpat")
    a.e(f"v_bfe_u32 v2, v{vLANE}, 4, 1")
    a.e("v_lshlrev_b32 v2, 2, v2")
    a.e(f"v_lshrrev_b32 v3, 5, v{vLANE}")
    a.e("v_lshl_add_u32 v2, v3, 1, v2")
    a.e(f"v_and_b32 v3, 7, v{vLANE}")
    a.e("v_xor_b32 v2, v2, v3")
    a.e("v_lshlrev_b32 v2, 4, v2")
    a.e(f"v_lshrrev_b32 v3, 3, v{vLANE}")
    a.e(f"v_lshl_add_u32 v{hD[0]}, v3, 8, v2")
    a.e(f"v_add_u32 v{hD[1]}, 1024, v{hD[0]}")
    a.lab("L_h_patdone")
    a.e(f"v_add_u32 v{hD[2]}, 2048, v{hD[0]}")
    a.e(f"v_add_u32 v{hD[3]}, 2048, v{hD[1]}")
    a.e(f"s_add_u32 s{sDSRD}, s{sDSRD}, s{sKVOFF}")
    a.e(f"s_addc_u32 s{sDSRD+1}, s{sDSRD+1}, 0")
    a.e(f"s_mov_b32 s{sDSRD+2}, 262144")
    a.e(f"s_mov_b32 s{sDSRD+3}, 0x20000")
    a.e(f"s_sub_u32 s{sOFF}, 1, s{sT0}")
    a.e(f"s_lshl_b32 s{sLDSB}, s{sT0}, 16")
    a.e(f"s_lshl_b32 s{sT0}, s{sT1}, 12")
    a.e(f"s_add_u32 s{sLDSB}, s{sLDSB}, s{sT0}")
    a.e(f"s_lshl_b32 s{sGB}, s{sT1}, 7")
    a.e(f"s_mov_b32 s{sNEXT}, 0")
    a.e(f"s_mov_b32 s{sSINK}, {SINK:#x}")

    def issue():
        a.e(f"s_and_b32 s{sT0}, s{sNEXT}, 0xffff")
        a.e(f"s_add_u32 s{sT0}, s{sT0}, s{sLDSB}")
        a.e(f"s_cmp_lt_u32 s{sNEXT}, 0x40000")
        a.e(f"s_cselect_b32 m0, s{sT0}, s{sSINK}")
        if OPT["order"] == "lock":
            a.e(f"s_add_u32 s{sT1}, s{sNEXT}, s{sGB}")
        else:
            msk = {"rot4": 3, "rot8": 7}[OPT["order"]] << 13
            a.e(f"s_add_u32 s{sT1}, s{sNEXT}, s{sROT}")
            a.e(f"s_and_b32 s{sT1}, s{sT1}, {msk:#x}")
            a.e(f"s_andn2_b32 s{sT2}, s{sNEXT}, {msk:#x}")
            a.e(f"s_or_b32 s{sT1}, s{sT1}, s{sT2}")
            a.e(f"s_add_u32 s{sT1}, s{sT1}, s{sGB}")
        for rg in range(4):
            a.e(f"buffer_load_dwordx4 v{hD[rg]}, s[{sDSRD}:{sDSRD+3}], s{sT1} offen offset:{rg*1024}{kvb} lds")
        a.e(f"s_add_u32 s{sNEXT}, s{sNEXT}, 0x2000")

    a.e(f"s_lshl_b32 s{sROT}, s{sMEM}, {14 if OPT['order']=='rot8' else 13}")
    a.e(f"s_lshl_b32 s{sT3}, s{sOFF}, 13")
    a.lab("L_h_init")
    issue()
    a.e(f"s_cmp_le_u32 s{sNEXT}, s{sT3}")
    a.e("s_cbranch_scc1 L_h_init")
    if "hp0" in FLAGS: a.e("s_setprio 0")
    a.e(f"v_and_b32 v2, 15, v{vLANE}")
    a.e(f"v_lshrrev_b32 v3, 4, v{vLANE}")
    a.e("v_lshrrev_b32 v13, 1, v2")
    a.e("v_xor_b32 v13, v13, v3")
    a.e("v_lshlrev_b32 v13, 4, v13")
    a.e(f"v_lshl_add_u32 v{hKC[0]}, v2, 7, v13")
    a.e(f"v_xor_b32 v{hKC[1]}, 64, v{hKC[0]}")
    a.e(f"v_bfe_u32 v13, v{vLANE}, 2, 2")
    a.e("v_lshl_add_u32 v14, v3, 2, v13")
    a.e("v_lshlrev_b32 v14, 7, v14")
    a.e("v_lshrrev_b32 v13, 1, v13")
    a.e("v_lshl_add_u32 v14, v13, 6, v14")
    a.e(f"v_and_b32 v13, 3, v{vLANE}")
    a.e("v_lshl_add_u32 v14, v13, 3, v14")
    a.e("v_and_b32 v13, 1, v3")
    a.e("v_lshl_add_u32 v14, v13, 5, v14")
    a.e(f"v_add_u32 v{hVC[0]}, {VRING:#x}, v14")
    a.e(f"v_mov_b32 v{hL}, 0")
    for i in range(32):
        a.e(f"v_mov_b32 v{hO+i}, 0")
    a.e(f"v_mov_b32 v13, {CNT:#x}")
    a.e("v_mov_b32 v14, 0")
    a.e("ds_write_b32 v13, v14")
    a.e(f"s_lshl_b32 s{sBS}, s{sH}, 13")
    a.stamp(2)

    def h_kreads(addr, off=0, us=(0, 1), dst=hK):
        for u in us:
            for s in range(4):
                a.e(f"ds_read_b128 {vr(dst+(u*4+s)*4,4)}, v{addr[s&1]} offset:{off+(s>>1)*4096+u*2048}")

    a.pstamp(3)
    a.e(f"v_add_u32 v{hKA[0]}, s{sQ9}, v{hKC[0]}")
    a.e(f"v_add_u32 v{hKA[1]}, s{sQ9}, v{hKC[1]}")
    a.e(f"s_cmp_eq_u32 s{sOFF}, 1")
    a.e("s_cbranch_scc1 L_h_q9k")
    a.e("s_waitcnt vmcnt(4)")
    a.lab("L_h_q9k")
    a.e("s_waitcnt vmcnt(8)")
    h_kreads(hKA, us=(0,), dst=hQ)
    a.e("s_waitcnt lgkmcnt(0)")
    a.e("s_setprio 0")
    scale_q(a, hQ, 16, [13, 14, 15, 242])
    a.e("s_setprio 2")
    a.e("s_waitcnt vmcnt(4) lgkmcnt(0)")
    a.pstamp(4)
    a.e("s_barrier")
    issue(); issue()
    a.pstamp(5)
    h_kreads(hKC)
    a.e("s_waitcnt vmcnt(8) lgkmcnt(0)")
    a.e("s_barrier")
    issue(); issue()
    for u in range(2):
        for s in range(4):
            mfma16(a, hS[u], hK + (u * 4 + s) * 4, hQ + 4 * s, "0" if s == 0 else hS[u])
    a.e("s_nop 7")
    a.e("s_nop 1")
    a.e(f"v_max3_f32 v13, v{hS[0]}, v{hS[0]+1}, v{hS[0]+2}")
    a.e(f"v_max3_f32 v13, v13, v{hS[0]+3}, v{hS[1]}")
    a.e(f"v_max3_f32 v13, v13, v{hS[1]+1}, v{hS[1]+2}")
    a.e(f"v_max_f32 v13, v13, v{hS[1]+3}")
    a.e("v_mov_b32 v14, v13")
    a.e("s_nop 1")
    a.e("v_permlane32_swap_b32 v13, v14")
    a.e("v_max_f32 v13, v13, v14")
    a.e("v_mov_b32 v14, v13")
    a.e("s_nop 1")
    a.e("v_permlane16_swap_b32 v13, v14")
    a.e("v_max_f32 v13, v13, v14")
    for i in range(4):
        a.e(f"v_sub_f32 v{hNEGM+i}, 0, v13")
    a.stamp(3)
    a.e(f"s_mov_b32 s{sN}, 31")
    cnt = [0]
    ool = []
    def sync():
        cnt[0] += 1
        tag = cnt[0]
        a.e(f"s_sub_u32 s{sN}, s{sN}, 1")
        a.e(f"s_cmp_ge_u32 s{sN}, 29")
        a.e(f"s_cbranch_scc1 L_sk_{tag}")
        a.e("s_waitcnt vmcnt(20) lgkmcnt(0)")
        if "nobar" not in FLAGS: a.e("s_barrier")
        a.lab(f"L_si_{tag}")
        if "nodma" not in FLAGS: issue()
        a.lab(f"L_sd_{tag}")
        ool.append(tag)
    a.e(f"s_mov_b32 s{sK}, s{sH}")
    a.lab("L_h_pre")
    a.e(f"s_sub_u32 s{sK}, s{sK}, 1")
    a.e("s_cbranch_scc1 L_h_go")
    sync()
    a.e("s_branch L_h_pre")
    a.lab("L_h_go")
    a.e(f"s_mov_b32 s{sK}, {(-7) & 0xffffffff:#x}")
    def h_sm(u):
        S_ = hS[u]
        for i in range(4):
            a.e(f"v_exp_f32 v{S_+i}, v{S_+i}")
        a.e("s_nop 0")
        for i in range(4):
            a.e(f"v_add_f32 v{hL}, v{hL}, v{S_+i}")
        a.e(f"v_cvt_pk_bf16_f32 v{hP+2*u}, v{S_}, v{S_+1}")
        a.e(f"v_cvt_pk_bf16_f32 v{hP+2*u+1}, v{S_+2}, v{S_+3}")
    a.l.append(".p2align 6")
    a.lab("L_h_loop")
    nh = "nohelp" in FLAGS
    dpst = {"on": "nodp" not in FLAGS}
    def hi():
        if dpst["on"]: a.e("s_setprio 2")
    def lo():
        if dpst["on"]: a.e("s_setprio 0")
    def phases():
        if not nh:
            lo()
            for e in range(2):
                a.e(f"v_add_u32 v{hKA[e]}, s{sBS}, v{hKC[e]}")
            a.e(f"v_add_u32 v{hVA[0]}, s{sBS}, v{hVC[0]}")
            for e in range(1, 4):
                a.e(f"v_xor_b32 v{hVA[e]}, {32*e}, v{hVA[0]}")
            a.e(f"s_add_u32 s{sBS}, s{sBS}, 0x8000")
            a.e(f"s_and_b32 s{sBS}, s{sBS}, 0xffff")
            h_kreads(hKA)
            a.e("s_waitcnt lgkmcnt(4)")
            hi()
            for s in range(4):
                mfma16(a, hS[0], hK + s * 4, hQ + 4 * s, hNEGM if s == 0 else hS[0])
            lo()
            for t16 in range(4):
                for u in range(2):
                    a.e(f"ds_read_b64_tr_b16 {vr(hV+4*t16+2*u,2)}, v{hVA[t16&3]} offset:{(t16>>2)*4096+u*2048}")
            hi()
        sync()
        if not nh:
            for s in range(4):
                mfma16(a, hS[1], hK + (4 + s) * 4, hQ + 4 * s, hNEGM if s == 0 else hS[1])
            lo()
            for t16 in range(4, 8):
                for u in range(2):
                    a.e(f"ds_read_b64_tr_b16 {vr(hV+4*t16+2*u,2)}, v{hVA[t16&3]} offset:{(t16>>2)*4096+u*2048}")
            h_sm(0)
            hi()
        sync()
        if not nh:
            lo()
            h_sm(1)
            hi()
            a.e("s_nop 1")
            for t16 in range(4):
                mfma16(a, hO + 4 * t16, hV + 4 * t16, hP, hO + 4 * t16)
        sync()
        if not nh:
            for t16 in range(4, 8):
                mfma16(a, hO + 4 * t16, hV + 4 * t16, hP, hO + 4 * t16)
        sync()
    phases()
    a.e(f"s_add_u32 s{sK}, s{sK}, 1")
    a.e("s_cbranch_scc0 L_h_loop")
    dpst["on"] = "tailhi" not in FLAGS
    phases()
    a.e("s_branch L_h_fin")
    for tag in ool:
        a.lab(f"L_sk_{tag}")
        a.e(f"s_cmp_gt_u32 s{sN}, 30")
        a.e(f"s_cbranch_scc1 L_st_{tag}")
        a.e(f"s_cmp_eq_u32 s{sN}, 29")
        a.e(f"s_cbranch_scc1 L_sr_{tag}")
        a.e("s_waitcnt vmcnt(12)")
        a.lab(f"L_sr_{tag}")
        a.e("s_waitcnt vmcnt(16) lgkmcnt(0)")
        if "nobar" not in FLAGS: a.e("s_barrier")
        issue()
        a.e(f"s_branch L_si_{tag}")
        a.lab(f"L_st_{tag}")
        a.e(f"s_mov_b32 s{sN}, 0")
        a.e("s_waitcnt lgkmcnt(0)")
        a.e("s_nop 7")
        a.e(f"s_branch L_sd_{tag}")
    a.lab("L_h_fin")
    a.stamp(4)
    a.e(f"v_mov_b32 v14, v{hL}")
    a.e("s_nop 1")
    a.e(f"v_permlane32_swap_b32 v{hL}, v14")
    a.e(f"v_add_f32 v{hL}, v{hL}, v14")
    a.e(f"v_mov_b32 v14, v{hL}")
    a.e("s_nop 1")
    a.e(f"v_permlane16_swap_b32 v{hL}, v14")
    a.e(f"v_add_f32 v{hL}, v{hL}, v14")
    a.e(f"s_lshl_b32 s{sT0}, s{sH}, 13")
    a.e(f"s_add_u32 s{sT0}, s{sT0}, {CAREA:#x}")
    a.e(f"v_lshlrev_b32 v13, 4, v{vLANE}")
    a.e(f"v_add_u32 v14, s{sT0}, v13")
    a.e("s_nop 4")
    for t16 in range(8):
        a.e(f"ds_write_b128 v14, {vr(hO+4*t16,4)} offset:{t16*1024}")
    a.e(f"s_lshl_b32 s{sT0}, s{sH}, 8")
    a.e(f"s_add_u32 s{sT0}, s{sT0}, {LAREA:#x}")
    a.e(f"v_lshlrev_b32 v15, 2, v{vLANE}")
    a.e(f"v_add_u32 v14, s{sT0}, v15")
    a.e(f"ds_write_b32 v14, v{hL}")
    a.e("s_waitcnt lgkmcnt(0)")
    a.e(f"v_mov_b32 v14, {CNT:#x}")
    a.e("v_mov_b32 v12, 1")
    a.e("s_mov_b64 exec, 1")
    a.e("ds_add_u32 v14, v12")
    a.e("s_mov_b64 exec, -1")
    a.e("s_setprio 0")
    a.lab("L_h_spin")
    a.e("s_sleep 1")
    a.e("ds_read_b32 v12, v14")
    a.e("s_waitcnt lgkmcnt(0)")
    a.e(f"v_readfirstlane_b32 s{sT0}, v12")
    a.e("s_nop 3")
    a.e(f"s_cmp_lt_u32 s{sT0}, 4")
    a.e("s_cbranch_scc1 L_h_spin")
    a.e("s_setprio 2")
    a.stamp(5)
    a.e(f"s_lshl_b32 s{sT0}, s{sH}, 11")
    a.e(f"s_add_u32 s{sT0}, s{sT0}, {CAREA:#x}")
    a.e(f"v_add_u32 v14, s{sT0}, v13")
    for x in range(4):
        for k in range(2):
            a.e(f"ds_read_b128 {vr(hX+(x*2+k)*4,4)}, v14 offset:{x*8192+k*1024}")
    a.e(f"v_add_u32 v14, {LAREA:#x}, v15")
    for x in range(4):
        a.e(f"ds_read_b32 v{hK+x}, v14 offset:{x*256}")
    a.e("s_waitcnt lgkmcnt(0)")
    a.e(f"v_add_f32 v13, v{hK}, v{hK+1}")
    a.e(f"v_add_f32 v14, v{hK+2}, v{hK+3}")
    a.e("v_add_f32 v13, v13, v14")
    a.e(f"v_cmp_nlt_f32 vcc, v13, s{sTHR}")
    a.e("v_rcp_f32 v15, v13")
    a.e("s_nop 3")
    a.e("s_cbranch_vccnz L_h_bad")
    for k in range(2):
        for i in range(4):
            r0 = hX + k * 4 + i
            a.e(f"v_add_f32 v{r0}, v{r0}, v{r0+8}")
            a.e(f"v_add_f32 v{r0+16}, v{r0+16}, v{r0+24}")
            a.e(f"v_add_f32 v{r0}, v{r0}, v{r0+16}")
            a.e(f"v_mul_f32 v{r0}, v{r0}, v15")
    for k in range(2):
        r0 = hX + k * 4
        a.e(f"v_cvt_pk_bf16_f32 v{hK+8+2*k}, v{r0}, v{r0+1}")
        a.e(f"v_cvt_pk_bf16_f32 v{hK+8+2*k+1}, v{r0+2}, v{r0+3}")
    a.e(f"v_lshlrev_b32 v14, 8, v2")
    a.e(f"v_lshl_add_u32 v14, v3, 3, v14")
    a.e(f"s_lshl_b32 s{sT0}, s{sH}, 6")
    a.e(f"s_add_u32 s{sT0}, s{sT0}, 0x8000")
    a.e(f"v_add_u32 v14, s{sT0}, v14")
    for k in range(2):
        a.e(f"buffer_store_dwordx2 {vr(hK+8+2*k,2)}, v14, s[{sOSRD}:{sOSRD+3}], s{sQOFF} offen offset:{32*k}{stb}")
    a.dump()
    a.lab("L_end")
    a.e("s_endpgm")
    a.lab("L_h_bad")
    a.e(f"s_cmp_lg_u32 s{sH}, 0")
    a.e("s_cbranch_scc1 L_end")
    a.e(f"s_mov_b32 s{sROW0}, 128")
    a.e(f"s_mov_b32 s{sPRIV}, {4*8192}")
    a.e("s_mov_b32 s56, 0x0000ffff")
    a.e("s_mov_b32 s57, 0x0000ffff")
    a.lab("L_slow")
    a.e("s_waitcnt vmcnt(0) lgkmcnt(0)")
    a.e("s_nop 7")
    a.e("s_nop 7")
    a.e(f"v_and_b32 v2, 31, v{vLANE}")
    a.e(f"v_lshrrev_b32 v3, 5, v{vLANE}")
    a.e(f"v_lshlrev_b32 v4, 8, v2")
    a.e(f"v_lshl_add_u32 v4, v3, 4, v4")
    a.e(f"s_lshl_b32 s{sT0}, s{sROW0}, 8")
    a.e(f"v_add_u32 v{vQO}, s{sT0}, v4")
    for s in range(8):
        a.e(f"buffer_load_dwordx4 {vr(vQ+4*s,4)}, v{vQO}, s[{sQSRD}:{sQSRD+3}], s{sQOFF} offen offset:{32*s}")
    a.e(f"v_bfe_u32 v13, v{vLANE}, 4, 1")
    a.e("v_lshlrev_b32 v13, 2, v13")
    a.e("v_lshl_add_u32 v13, v3, 1, v13")
    a.e(f"v_and_b32 v14, 7, v{vLANE}")
    a.e("v_xor_b32 v13, v13, v14")
    a.e("v_lshlrev_b32 v13, 4, v13")
    a.e(f"v_lshrrev_b32 v14, 3, v{vLANE}")
    a.e("v_lshl_add_u32 v5, v14, 8, v13")
    a.e(f"v_bfe_u32 v13, v{vLANE}, 2, 2")
    a.e("v_lshl_add_u32 v14, v3, 2, v13")
    a.e("v_lshlrev_b32 v14, 7, v14")
    a.e("v_lshrrev_b32 v13, 1, v13")
    a.e("v_lshl_add_u32 v14, v13, 6, v14")
    a.e(f"v_bfe_u32 v13, v{vLANE}, 4, 1")
    a.e("v_xor_b32 v13, v13, v3")
    a.e("v_lshl_add_u32 v14, v13, 5, v14")
    a.e(f"v_and_b32 v13, 3, v{vLANE}")
    a.e("v_lshl_add_u32 v14, v13, 3, v14")
    a.e(f"v_add_u32 v{vVA[0]}, s{sPRIV}, v14")
    a.e(f"v_xor_b32 v{vVA[1]}, 64, v{vVA[0]}")
    a.e("s_waitcnt vmcnt(0)")
    scale_q(a, vQ, 32, [13, 14, 15, 2])
    a.e("v_mov_b32 v6, 0xff800000")
    a.e(f"s_mov_b32 s{sT1}, s{sKVOFF}")
    a.e(f"s_mov_b32 s{sN}, 0")
    def sl_qk(c0):
        for s in range(8):
            a.e(f"buffer_load_dwordx4 {vr(vK+4*s,4)}, v4, s[{sKSRD}:{sKSRD+3}], s{sT1} offen offset:{32*s}")
        a.e("s_waitcnt vmcnt(0)")
        for s in range(8):
            mfma32(a, vS[0], vK + 4 * s, vQ + 4 * s, c0 if s == 0 else vS[0])
        a.e("s_nop 7")
        a.e("s_nop 7")
    a.lab("L_slow_p1")
    sl_qk("0")
    for i in range(0, 16, 2):
        a.e(f"v_max3_f32 v6, v6, v{vS[0]+i}, v{vS[0]+i+1}")
    a.e(f"s_add_u32 s{sT1}, s{sT1}, 0x2000")
    a.e(f"s_add_u32 s{sN}, s{sN}, 1")
    a.e(f"s_cmp_lt_u32 s{sN}, 32")
    a.e("s_cbranch_scc1 L_slow_p1")
    a.e("v_mov_b32 v14, v6")
    a.e("s_nop 1")
    a.e("v_permlane32_swap_b32 v6, v14")
    a.e("v_max_f32 v6, v6, v14")
    for i in range(16):
        a.e(f"v_sub_f32 v{vNEGM+i}, 0, v6")
    for i in range(64):
        a.e(f"v_mov_b32 v{vO+i}, 0")
    a.e(f"v_mov_b32 v{vL[0]}, 0")
    a.e(f"s_mov_b32 s{sT1}, s{sKVOFF}")
    a.e(f"s_mov_b32 s{sN}, 0")
    a.lab("L_slow_p2")
    for p in range(8):
        hf = p >> 2; rg = p & 3
        a.e(f"s_add_u32 m0, s{sPRIV}, {hf*4096 + rg*1024}")
        a.e(f"s_add_u32 s{sT2}, s{sT1}, {rg*2048 + hf*128}")
        a.e(f"buffer_load_dwordx4 v5, s[{sVSRD}:{sVSRD+3}], s{sT2} offen lds")
    sl_qk(vNEGM)
    lg2 = LG()
    for n in range(16):
        vread(a, lg2, 0, n, 0)
        if n == 7: a.e("s_waitcnt lgkmcnt(0)")
    for e in range(16):
        a.e(f"v_exp_f32 v{vS[0]+e}, v{vS[0]+e}")
    a.e("s_nop 0")
    for e in range(16):
        a.e(f"v_add_f32 v{vL[0]}, v{vL[0]}, v{vS[0]+e}")
    for k in range(8):
        Cv(a, 0, k)
    a.e("s_waitcnt lgkmcnt(0)")
    a.e("s_nop 1")
    for ks in range(2):
        for t in range(4):
            mfma32(a, vO + 16 * t, vV + 4 * (ks * 4 + t), vP[0] + 4 * ks, vO + 16 * t)
    a.e(f"s_add_u32 s{sT1}, s{sT1}, 0x2000")
    a.e(f"s_add_u32 s{sN}, s{sN}, 1")
    a.e(f"s_cmp_lt_u32 s{sN}, 32")
    a.e("s_cbranch_scc1 L_slow_p2")
    a.e(f"v_mov_b32 v14, v{vL[0]}")
    a.e("s_nop 1")
    a.e(f"v_permlane32_swap_b32 v{vL[0]}, v14")
    a.e(f"v_add_f32 v13, v{vL[0]}, v14")
    a.e("v_rcp_f32 v15, v13")
    a.e("s_nop 7")
    a.e("s_nop 7")
    for t in range(4):
        for k in range(2):
            o = vO + 16 * t + 8 * k
            x = vX + 4 * (2 * t + k)
            for i in range(8):
                a.e(f"v_mul_f32 v{o+i}, v{o+i}, v15")
            for i in range(4):
                a.e(f"v_cvt_pk_bf16_f32 v{x+i}, v{o+2*i}, v{o+2*i+1}")
            a.e("s_nop 1")
            a.e(f"v_permlane32_swap_b32 v{x}, v{x+2}")
            a.e(f"v_permlane32_swap_b32 v{x+1}, v{x+3}")
    a.e("s_mov_b64 exec, s[56:57]")
    for t in range(4):
        for k in range(2):
            x = vX + 4 * (2 * t + k)
            a.e(f"buffer_store_dwordx4 {vr(x,4)}, v{vQO}, s[{sOSRD}:{sOSRD+3}], s{sQOFF} offen offset:{64*t+32*k}")
    a.e("s_endpgm")
    a.l.append('.section .rodata,"a"')
    a.l.append(".p2align 6")
    a.l.append(f".amdhsa_kernel {NAME}_kernel")
    a.l.append("  .amdhsa_next_free_vgpr 256")
    a.l.append("  .amdhsa_next_free_sgpr 80")
    a.l.append("  .amdhsa_accum_offset 256")
    a.l.append("  .amdhsa_group_segment_fixed_size 0")
    a.l.append("  .amdhsa_kernarg_size 48")
    a.l.append("  .amdhsa_user_sgpr_count 2")
    a.l.append("  .amdhsa_user_sgpr_kernarg_segment_ptr 1")
    a.l.append("  .amdhsa_system_sgpr_workgroup_id_x 1")
    a.l.append(".end_amdhsa_kernel")
    return a.text()

if __name__ == "__main__":
    out = sys.argv[1] if len(sys.argv) > 1 else OUT
    for x in sys.argv[2:]:
        if x == "dbg": DBG = True
        elif "=" in x:
            k, v = x.split("="); OPT[k] = v.replace("+", " ").replace("none", "")
        else: FLAGS.add(x)
    open(out, "w").write(gen())
    print("wrote", out)
```

```python
import sys, struct, math

NAME = "standalone__gqa_softmax__near_ridge"
OUT = f"cdna_kernels/{NAME}.s"

def f32bits(x):
    return struct.unpack("<I", struct.pack("<f", x))[0]

CSCALE = (128 ** -0.5) * math.log2(math.e)
LTHRESH = 2.0 ** 40

KRING = 0
VRING = 65536
LAREA = 131072
CNT = LAREA + 1024
SINK = LAREA + 2048
LDS_BYTES = SINK + 4096
CAREA = VRING
QST = VRING + 4 * 8192
Q9ST = KRING + 7 * 8192

DBG = False
FLAGS = set()
OPT = {"kv": "nt", "q": "nt", "st": "", "order": "lock"}

sWAVE = 3
class A:
    def __init__(s):
        s.l = []
    def e(s, t):
        s.l.append("  " + t)
    def lab(s, t):
        s.l.append(t + ":")
    def c(s, t):
        s.l.append("  ; " + t)
    def text(s):
        return "\n".join(s.l) + "\n"
    def pstamp(s, i):
        if DBG and "pst" in FLAGS:
            s.e(f"s_memtime s[{60+2*i}:{61+2*i}]")
            s.e("s_waitcnt lgkmcnt(0)")
    def stamp(s, i):
        if DBG and ("pst" not in FLAGS or i == 1):
            s.e(f"s_memtime s[{60+2*i}:{61+2*i}]")
    def rstamp(s, i):
        if DBG:
            s.e(f"s_memrealtime s[{60+2*i}:{61+2*i}]")
    def dump(s):
        if not DBG: return
        s.e("s_load_dwordx2 s[56:57], s[0:1], 40")
        s.e("s_waitcnt vmcnt(0) lgkmcnt(0)")
        s.e("s_memtime s[72:73]")
        s.e("s_memrealtime s[74:75]")
        s.e("s_waitcnt lgkmcnt(0)")
        s.e(f"s_lshl_b32 s58, s2, 3")
        s.e(f"s_add_u32 s58, s58, s{sWAVE}")
        s.e("s_lshl_b32 s58, s58, 5")
        s.e("v_mov_b32 v250, s58")
        s.e("s_mov_b64 exec, 1")
        s.e("v_mov_b32 v251, s60")
        s.e("global_store_dword v250, v251, s[56:57]")
        for i in range(2, 7):
            s.e(f"s_sub_u32 s59, s{60+2*i}, s62")
            s.e("v_mov_b32 v251, s59")
            s.e(f"global_store_dword v250, v251, s[56:57] offset:{4*(i-1)}")
        s.e("v_mov_b32 v251, s74")
        s.e("global_store_dword v250, v251, s[56:57] offset:28")
        s.e("s_waitcnt vmcnt(0)")

def vr(b, n):
    return f"v[{b}:{b+n-1}]"

vLANE = 1
vKA = [4, 5, 6, 7]; vVA = [8, 9]; vKC = [240, 241, 242, 243]; vVC = [244, 245]
vL = [10, 11]; vQO = 12
vQ = 16; vNEGM = 48; vS = [64, 80]; vP = [96, 104]; vK = 112; vV = 144; vO = 176
vX = 112
vONES = 248; vLA = 252

sQSRD = 8; sKSRD = 12; sVSRD = 16; sOSRD = 20; sDSRD = 24
sG = 32; sMEM = 33; sHEAD = 34; sQOFF = 35; sKVOFF = 36; sC = 37; sLOOP = 38; sKB = 39; sVB = 40
sN = 41; sH = 42; sLDSB = 43; sOFF = 44; sNEXT = 45; sT0 = 46; sT1 = 47; sT2 = 48; sTHR = 49
sK = 50; sT3 = 51; sGB = 52; sSINK = 53; sROT = 54; sBS = 55; sROW0 = 58; sPRIV = 59; sQ9 = 56

class LG:
    def __init__(s):
        s.n = 0; s.done = 0; s.tag = {}; s.inloop = False
    def issue(s, tag):
        s.tag[tag] = s.n; s.n += 1
    def need(s, a, tags):
        m = max(s.tag[t] for t in tags)
        if m < s.done:
            return
        cnt = s.n - 1 - m
        assert cnt <= 15, cnt
        if "nowait" in FLAGS and s.inloop: a.e("s_nop 0")
        else: a.e(f"s_waitcnt lgkmcnt({cnt})")
        s.done = m + 1

def mfma32(a, d, A_, B_, c):
    cs = c if isinstance(c, str) else vr(c, 16)
    a.e(f"v_mfma_f32_32x32x16_bf16 {vr(d,16)}, {vr(A_,4)}, {vr(B_,4)}, {cs}")

def mfma16(a, d, A_, B_, c):
    cs = c if isinstance(c, str) else vr(c, 4)
    a.e(f"v_mfma_f32_16x16x32_bf16 {vr(d,4)}, {vr(A_,4)}, {vr(B_,4)}, {cs}")

def kread(a, lg, s, slotoff, addr=None, dst=None):
    ad = (addr or vKA)[s & 3]
    if not (FLAGS & {"nolds", "nok"}) or not lg.inloop:
        a.e(f"ds_read_b128 {vr((dst or vK)+4*s,4)}, v{ad} offset:{slotoff + (s>>2)*4096}")
    lg.issue(("K", s))

def vread(a, lg, tile, n, slotoff):
    f = n >> 1; jj = n & 1
    ks = f >> 2; t = f & 3
    if not (FLAGS & {"nolds", "nov"}) or not lg.inloop:
        a.e(f"ds_read_b64_tr_b16 {vr(vV+4*f+2*jj,2)}, v{vVA[t&1]} offset:{slotoff + (t>>1)*4096 + ks*2048 + jj*1024}")
    lg.issue(("V", tile, n))

def E(a, buf, e):
    if "noexp" not in FLAGS: a.e(f"v_exp_f32 v{vS[buf]+e}, v{vS[buf]+e}")
def Ad(a, buf, e):
    if "valuadd" in FLAGS: a.e(f"v_add_f32 v{vL[e&1]}, v{vL[e&1]}, v{vS[buf]+e}")
def Cv(a, buf, k): a.e(f"v_cvt_pk_bf16_f32 v{vP[buf]+k}, v{vS[buf]+2*k}, v{vS[buf]+2*k+1}")

def slot(a, lg, par, qk=True, kr=True, vnext=True, bar=True, smn=True, extra=None):
    cur = par; nxt = 1 - par
    extra = extra or {}
    for g in range(16):
        W = int(OPT.get("wg", "2"))
        if g < 8:
            if qk and g % W == 0:
                lg.need(a, [("K", g + i) for i in range(W)])
        else:
            if g % W == 0:
                f = g - 8
                lg.need(a, [("V", cur, 2 * (f + i) + 1) for i in range(W)])
        if g < 8:
            if qk:
                mfma32(a, vS[nxt], vK + 4 * g, vQ + 4 * g, vNEGM if g == 0 else vS[nxt])
        else:
            ks = (g - 8) >> 2; t = g & 3
            mfma32(a, vO + 16 * t, vV + 4 * (ks * 4 + t), vP[cur] + 4 * ks, vO + 16 * t)
        if g <= 8:
            vread(a, lg, cur, g + 7, cur * 8192)
        elif vnext:
            vread(a, lg, nxt, g - 9, nxt * 8192)
        if g % 2 == 1 and kr:
            kread(a, lg, (g - 1) // 2, par * 8192)
        if g <= 9:
            e = g + 6
            E(a, cur, e); Ad(a, cur, e - 1)
            if e % 2 == 0: Cv(a, cur, (e - 2) // 2)
        else:
            e = g - 10
            if smn: E(a, nxt, e)
            if e == 0:
                Ad(a, cur, 15); Cv(a, cur, 7)
            elif smn:
                Ad(a, nxt, e - 1)
                if e % 2 == 0: Cv(a, nxt, (e - 2) // 2)
        if "valuadd" not in FLAGS:
            l0, l1 = (int(x) for x in OPT.get("lpos", "4,12").split(","))
            if g == l0: mfma16(a, vLA, vONES, vP[cur], vLA)
            if g == l1: mfma16(a, vLA, vONES, vP[cur] + 4, vLA)
        if g == 0 and bar and "nobar" not in FLAGS:
            a.e("s_barrier")
        for x in extra.get(g, []):
            a.e(x)

def scale_q(a, base, n, t):
    for i in range(0, n, 2):
        r = base + i
        a.e(f"v_lshlrev_b32 v{t[0]}, 16, v{r}")
        a.e(f"v_and_b32 v{t[1]}, 0xffff0000, v{r}")
        a.e(f"v_lshlrev_b32 v{t[2]}, 16, v{r+1}")
        a.e(f"v_and_b32 v{t[3]}, 0xffff0000, v{r+1}")
        for k in range(4):
            a.e(f"v_mul_f32 v{t[k]}, s{sC}, v{t[k]}")
        a.e(f"v_cvt_pk_bf16_f32 v{r}, v{t[0]}, v{t[1]}")
        a.e(f"v_cvt_pk_bf16_f32 v{r+1}, v{t[2]}, v{t[3]}")

def store_out(a, stb):
    for t in range(4):
        for k in range(2):
            o = vO + 16 * t + 8 * k
            x = vX + 4 * (2 * t + k)
            for i in range(8):
                a.e(f"v_mul_f32 v{o+i}, v{o+i}, v15")
            for i in range(4):
                a.e(f"v_cvt_pk_bf16_f32 v{x+i}, v{o+2*i}, v{o+2*i+1}")
            a.e("s_nop 1")
            a.e(f"v_permlane32_swap_b32 v{x}, v{x+2}")
            a.e(f"v_permlane32_swap_b32 v{x+1}, v{x+3}")
            a.e(f"buffer_store_dwordx4 {vr(x,4)}, v{vQO}, s[{sOSRD}:{sOSRD+3}], s{sQOFF} offen offset:{64*t+32*k}{stb}")

def store_out_lds(a, stb):
    a.e(f"v_and_b32 v2, 31, v{vLANE}")
    a.e(f"v_lshrrev_b32 v3, 5, v{vLANE}")
    a.e(f"v_and_b32 v13, 15, v{vLANE}")
    a.e("v_xor_b32 v3, v3, v13")
    a.e("v_lshlrev_b32 v3, 4, v3")
    a.e("v_lshl_add_u32 v3, v2, 8, v3")
    a.e(f"v_add_u32 v3, s{sPRIV}, v3")
    a.e(f"v_lshrrev_b32 v2, 4, v{vLANE}")
    a.e("v_xor_b32 v13, v13, v2")
    a.e("v_lshlrev_b32 v13, 4, v13")
    a.e("v_lshl_add_u32 v13, v2, 8, v13")
    a.e(f"v_add_u32 v4, s{sPRIV}, v13")
    for j in range(1, 4):
        a.e(f"v_xor_b32 v{4+j}, {64*j}, v4")
    a.e(f"v_lshlrev_b32 v8, 4, v{vLANE}")
    a.e(f"s_lshl_b32 s{sT0}, s{sWAVE}, 13")
    a.e(f"s_add_u32 s{sT0}, s{sT0}, s{sQOFF}")
    a.e(f"s_add_u32 s{sT1}, s{sT0}, 4096")
    for t in range(4):
        for k in range(2):
            o = vO + 16 * t + 8 * k
            x = vX + 4 * (2 * t + k)
            for i in range(8):
                a.e(f"v_mul_f32 v{o+i}, v{o+i}, v15")
            for i in range(4):
                a.e(f"v_cvt_pk_bf16_f32 v{x+i}, v{o+2*i}, v{o+2*i+1}")
            a.e(f"v_xor_b32 v14, {(4*t+2*k)*16}, v3")
            a.e("s_nop 0")
            a.e(f"v_permlane32_swap_b32 v{x}, v{x+2}")
            a.e(f"v_permlane32_swap_b32 v{x+1}, v{x+3}")
            a.e(f"ds_write_b128 v14, {vr(x,4)}")
    a.e("s_waitcnt lgkmcnt(0)")
    for j in range(8):
        a.e(f"ds_read_b128 {vr(vV+4*j,4)}, v{4+(j&3)} offset:{j*1024}")
    for j in range(8):
        a.e(f"s_waitcnt lgkmcnt({7-j})")
        a.e(f"buffer_store_dwordx4 {vr(vV+4*j,4)}, v8, s[{sOSRD}:{sOSRD+3}], s{sT0 if j < 4 else sT1} offen offset:{(j&3)*1024}{stb}")

def kpat(a, d0, d1, lane, t0, t1):
    a.e(f"v_lshrrev_b32 v{t0}, 4, v{lane}")
    a.e(f"v_and_b32 v{t1}, 7, v{lane}")
    a.e(f"v_xor_b32 v{t0}, v{t0}, v{t1}")
    a.e(f"v_lshlrev_b32 v{t0}, 4, v{t0}")
    a.e(f"v_lshrrev_b32 v{t1}, 3, v{lane}")
    a.e(f"v_lshl_add_u32 v{d0}, v{t1}, 8, v{t0}")
    a.e(f"v_xor_b32 v{d1}, 64, v{d0}")

ISS = []
def issue(part=None):
    ISS[-1](part)

def gen():
    a = A()
    kvb = (" " + OPT["kv"]) if OPT["kv"] else ""
    qb = (" " + OPT["q"]) if OPT["q"] else ""
    stb = (" " + OPT["st"]) if OPT["st"] else ""
    hdr = open(f"cdna_kernels/{NAME}.s.ref").read().split("; @launch")[0]
    a.l.append(hdr.rstrip("\n"))
    a.l.append(f"; @launch grid=(256,1,1) block=(512,1,1) lds={LDS_BYTES}")
    a.l.append('.amdgcn_target "amdgcn-amd-amdhsa--gfx950"')
    a.l.append(".text")
    a.l.append(f".globl {NAME}_kernel")
    a.l.append(".p2align 8")
    a.l.append(f".type {NAME}_kernel,@function")
    a.lab(f"{NAME}_kernel")
    a.e("s_cmp_ge_u32 s2, 256")
    a.e("s_cbranch_scc1 L_end")
    a.rstamp(0); a.stamp(1)
    a.e("s_load_dwordx4 s[4:7], s[0:1], 0")
    a.e("s_load_dwordx4 s[28:31], s[0:1], 16")
    a.e("v_lshrrev_b32 v1, 6, v0")
    a.e(f"s_and_b32 s{sG}, s2, 7")
    a.e(f"v_readfirstlane_b32 s{sWAVE}, v1")
    a.e(f"v_and_b32 v{vLANE}, 63, v0")
    a.e(f"s_lshr_b32 s{sMEM}, s2, 5")
    if "contig" in FLAGS:
        a.e(f"s_lshl_b32 s{sG}, s{sG}, 3")
    else:
        a.e(f"s_lshl_b32 s{sMEM}, s{sMEM}, 3")
    a.e(f"s_add_u32 s{sG}, s{sG}, s{sMEM}")
    a.e(f"s_lshr_b32 s{sMEM}, s2, 3")
    a.e(f"s_and_b32 s{sMEM}, s{sMEM}, 3")
    a.e(f"s_lshl_b32 s{sHEAD}, s{sG}, 2")
    a.e(f"s_add_u32 s{sHEAD}, s{sHEAD}, s{sMEM}")
    a.e(f"s_mul_i32 s{sQOFF}, s{sHEAD}, 36864")
    a.e(f"s_lshl_b32 s{sKVOFF}, s{sG}, 18")
    a.e(f"s_mov_b32 s{sC}, {f32bits(CSCALE):#x}")
    a.e(f"s_mov_b32 s{sTHR}, {f32bits(LTHRESH):#x}")
    kpat(a, 14, 15, vLANE, 2, 3)
    a.e("s_waitcnt lgkmcnt(0)")
    a.pstamp(2)
    for srd, p, nb in ((sQSRD, 4, 9437184), (sKSRD, 6, 16777216), (sVSRD, 28, 16777216), (sOSRD, 30, 9437184)):
        a.e(f"s_mov_b32 s{srd}, s{p}")
        a.e(f"s_and_b32 s{srd+1}, s{p+1}, 0xffff")
        a.e(f"s_mov_b32 s{srd+2}, {nb}")
        a.e(f"s_mov_b32 s{srd+3}, 0x20000")
    hD = [4, 5, 243, 244]; hKC = [6, 7]; hVC = [8, 9]; hKA = [11, 12]; hVA = [240, 241, 245, 246]; hL = 10
    hQ = 16; hNEGM = 32; hS = [36, 40]; hP = 44; hK = 48; hV = 80; hO = 112; hX = 144
    def helper_head():
        a.lab("L_helper")
        a.e("s_setprio 2")
        a.e(f"s_sub_u32 s{sH}, s{sWAVE}, 4")
        a.e(f"s_lshr_b32 s{sT0}, s{sH}, 1")
        a.e(f"s_and_b32 s{sT1}, s{sH}, 1")
        a.e(f"s_lshl_b32 s{sT2}, s{sT0}, 13")
        a.e(f"s_lshl_b32 s{sT3}, s{sT1}, 11")
        a.e(f"s_add_u32 s{sT2}, s{sT2}, s{sT3}")
        a.e(f"s_add_u32 s{sQ9}, s{sT2}, {6*8192:#x}")
        a.e(f"s_add_u32 s{sT2}, s{sQOFF}, 0x8000")
        for p in range(4):
            hf = p >> 1; rg = p & 1
            a.e(f"s_add_u32 m0, s{sQ9}, {hf*4096 + rg*1024}")
            a.e(f"s_add_u32 s{sT3}, s{sT2}, {rg*2048 + hf*128}")
            a.e(f"buffer_load_dwordx4 v{14+rg}, s[{sQSRD}:{sQSRD+3}], s{sT3} offen{qb} lds")
        a.e(f"s_cmp_eq_u32 s{sT0}, 1")
        a.e(f"s_cselect_b32 s{sDSRD}, s{sVSRD}, s{sKSRD}")
        a.e(f"s_cselect_b32 s{sDSRD+1}, s{sVSRD+1}, s{sKSRD+1}")
        a.e("s_cbranch_scc1 L_h_vpat")
        a.e(f"v_mov_b32 v{hD[0]}, v14")
        a.e(f"v_add_u32 v{hD[1]}, 1024, v15")
        a.e("s_branch L_h_patdone")
        a.lab("L_h_vpat")
        a.e(f"v_bfe_u32 v2, v{vLANE}, 4, 1")
        a.e("v_lshlrev_b32 v2, 2, v2")
        a.e(f"v_lshrrev_b32 v3, 5, v{vLANE}")
        a.e("v_lshl_add_u32 v2, v3, 1, v2")
        a.e(f"v_and_b32 v3, 7, v{vLANE}")
        a.e("v_xor_b32 v2, v2, v3")
        a.e("v_lshlrev_b32 v2, 4, v2")
        a.e(f"v_lshrrev_b32 v3, 3, v{vLANE}")
        a.e(f"v_lshl_add_u32 v{hD[0]}, v3, 8, v2")
        a.e(f"v_add_u32 v{hD[1]}, 1024, v{hD[0]}")
        a.lab("L_h_patdone")
        a.e(f"v_add_u32 v{hD[2]}, 2048, v{hD[0]}")
        a.e(f"v_add_u32 v{hD[3]}, 2048, v{hD[1]}")
        a.e(f"s_add_u32 s{sDSRD}, s{sDSRD}, s{sKVOFF}")
        a.e(f"s_addc_u32 s{sDSRD+1}, s{sDSRD+1}, 0")
        a.e(f"s_mov_b32 s{sDSRD+2}, 262144")
        a.e(f"s_mov_b32 s{sDSRD+3}, 0x20000")
        a.e(f"s_sub_u32 s{sOFF}, 1, s{sT0}")
        a.e(f"s_lshl_b32 s{sLDSB}, s{sT0}, 16")
        a.e(f"s_lshl_b32 s{sT0}, s{sT1}, 12")
        a.e(f"s_add_u32 s{sLDSB}, s{sLDSB}, s{sT0}")
        a.e(f"s_lshl_b32 s{sGB}, s{sT1}, 7")
        a.e(f"s_mov_b32 s{sNEXT}, 0")
        a.e(f"s_mov_b32 s{sSINK}, {SINK:#x}")

        def _issue(part=None):
            if part in (None, 0):
                a.e(f"s_and_b32 s{sT0}, s{sNEXT}, 0xffff")
                a.e(f"s_add_u32 s{sT0}, s{sT0}, s{sLDSB}")
                a.e(f"s_cmp_lt_u32 s{sNEXT}, 0x40000")
                a.e(f"s_cselect_b32 m0, s{sT0}, s{sSINK}")
                a.e(f"s_add_u32 s{sT1}, s{sNEXT}, s{sGB}")
            rgs = range(4) if part is None else (range(2) if part == 0 else range(2, 4))
            for rg in rgs:
                a.e(f"buffer_load_dwordx4 v{hD[rg]}, s[{sDSRD}:{sDSRD+3}], s{sT1} offen offset:{rg*1024}{kvb} lds")
            if part in (None, 0):
                a.e(f"s_add_u32 s{sNEXT}, s{sNEXT}, 0x2000")
        ISS.append(_issue)

        a.e(f"s_lshl_b32 s{sROT}, s{sMEM}, {14 if OPT['order']=='rot8' else 13}")
        a.e(f"s_lshl_b32 s{sT3}, s{sOFF}, 13")
        a.lab("L_h_init")
        issue()
        a.e(f"s_cmp_le_u32 s{sNEXT}, s{sT3}")
        a.e("s_cbranch_scc1 L_h_init")
    if "near" in FLAGS:
        a.e(f"s_cmp_lt_u32 s{sWAVE}, 4")
        a.e("s_cbranch_scc1 L_main")
        helper_head()
        a.e("s_branch L_helper2")
        a.lab("L_main")
    else:
        a.e(f"s_cmp_ge_u32 s{sWAVE}, 4")
        a.e("s_cbranch_scc1 L_helper")

    a.c("---- main wave ----")
    a.e(f"s_lshl_b32 s{sT0}, s{sWAVE}, 13")
    a.e(f"s_add_u32 s{sT1}, s{sT0}, s{sQOFF}")
    a.e(f"s_add_u32 s{sT2}, s{sT0}, {QST:#x}")
    for p in range(8):
        hf = p >> 2; rg = p & 3
        a.e(f"s_add_u32 m0, s{sT2}, {hf*4096 + rg*1024}")
        a.e(f"s_add_u32 s{sT3}, s{sT1}, {rg*2048 + hf*128}")
        a.e(f"buffer_load_dwordx4 v{14 + (rg&1)}, s[{sQSRD}:{sQSRD+3}], s{sT3} offen{qb} lds")
    a.e(f"v_and_b32 v2, 31, v{vLANE}")
    a.e(f"v_lshrrev_b32 v3, 5, v{vLANE}")
    a.e(f"v_lshlrev_b32 v{vQO}, 8, v2")
    a.e(f"v_lshl_add_u32 v{vQO}, v3, 4, v{vQO}")
    a.e(f"v_add_u32 v{vQO}, s{sT0}, v{vQO}")
    a.e("v_bfe_u32 v13, v2, 1, 3")
    a.e("v_xor_b32 v13, v13, v3")
    a.e("v_lshlrev_b32 v13, 4, v13")
    a.e(f"v_lshl_add_u32 v{vKC[0]}, v2, 7, v13")
    for e in range(1, 4):
        a.e(f"v_xor_b32 v{vKC[e]}, {32*e}, v{vKC[0]}")
    a.e(f"v_bfe_u32 v13, v{vLANE}, 2, 2")
    a.e("v_lshl_add_u32 v14, v3, 2, v13")
    a.e("v_lshlrev_b32 v14, 7, v14")
    a.e("v_lshrrev_b32 v13, 1, v13")
    a.e("v_lshl_add_u32 v14, v13, 6, v14")
    a.e(f"v_bfe_u32 v13, v{vLANE}, 4, 1")
    a.e("v_xor_b32 v13, v13, v3")
    a.e("v_lshl_add_u32 v14, v13, 5, v14")
    a.e(f"v_and_b32 v13, 3, v{vLANE}")
    a.e(f"v_lshl_add_u32 v14, v13, 3, v14")
    a.e(f"v_add_u32 v{vVC[0]}, {VRING:#x}, v14")
    a.e(f"v_xor_b32 v{vVC[1]}, 64, v{vVC[0]}")
    a.e(f"v_mov_b32 v{vVA[0]}, v{vVC[0]}")
    a.e(f"v_mov_b32 v{vVA[1]}, v{vVC[1]}")
    for e in range(4):
        a.e(f"v_add_u32 v{vKA[e]}, s{sT2}, v{vKC[e]}")
    a.e(f"v_mov_b32 v{vL[0]}, 0")
    a.e(f"v_mov_b32 v{vL[1]}, 0")
    a.e(f"v_and_b32 v13, 3, v{vLANE}")
    a.e(f"v_bfe_u32 v14, v{vLANE}, 4, 1")
    a.e("v_cmp_eq_u32 vcc, v13, v14")
    a.e("v_mov_b32 v13, 0x3f803f80")
    a.e("s_nop 1")
    for i in range(4):
        a.e(f"v_cndmask_b32 v{vONES+i}, 0, v13, vcc")
        a.e(f"v_mov_b32 v{vLA+i}, 0")
    for i in range(64):
        a.e(f"v_mov_b32 v{vO+i}, 0")
    a.e(f"s_mov_b32 s{sKB}, 1")
    a.e(f"s_mov_b32 s{sVB}, 0")
    a.e(f"s_mov_b32 s{sLOOP}, {(-15) & 0xffffffff:#x}")
    lg = LG()
    a.pstamp(3)
    a.e("s_waitcnt vmcnt(4)")
    for s in range(4):
        kread(a, lg, s, 0, dst=vQ)
    for s in range(4):
        lg.need(a, [("K", s)])
        scale_q(a, vQ + 4 * s, 4, [13, 14, 15, 2])
    a.e("s_waitcnt vmcnt(0)")
    for s in range(4, 8):
        kread(a, lg, s, 0, dst=vQ)
    a.e("s_waitcnt lgkmcnt(0)")
    lg.done = lg.n
    a.stamp(2)
    a.pstamp(4)
    if DBG: a.e("s_waitcnt lgkmcnt(0)")
    a.e("s_barrier")
    a.pstamp(5)
    for s in range(8):
        kread(a, lg, s, 0, addr=vKC)
    scale_q(a, vQ + 16, 4, [13, 14, 15, 2])
    for s in range(8):
        lg.need(a, [("K", s)])
        mfma32(a, vS[0], vK + 4 * s, vQ + 4 * s, "0" if s == 0 else vS[0])
        if s < 3:
            scale_q(a, vQ + 4 * (s + 5), 4, [13, 14, 15, 2])
            a.e("s_nop 1")
    a.e("s_barrier")
    for s in range(8):
        kread(a, lg, s, 8192, addr=vKC)
    for n in range(7):
        vread(a, lg, 0, n, 0)
    for e in range(4):
        a.e(f"v_add_u32 v{vKA[e]}, 0x4000, v{vKC[e]}")
    S = vS[0]
    a.e(f"v_max3_f32 v13, v{S}, v{S+1}, v{S+2}")
    a.e(f"v_max3_f32 v14, v{S+3}, v{S+4}, v{S+5}")
    a.e(f"v_max3_f32 v13, v13, v{S+6}, v{S+7}")
    a.e(f"v_max3_f32 v14, v14, v{S+8}, v{S+9}")
    a.e(f"v_max3_f32 v13, v13, v{S+10}, v{S+11}")
    a.e(f"v_max3_f32 v14, v14, v{S+12}, v{S+13}")
    a.e(f"v_max3_f32 v13, v13, v{S+14}, v{S+15}")
    a.e("v_max_f32 v13, v13, v14")
    a.e("v_mov_b32 v14, v13")
    a.e("s_nop 1")
    a.e("v_permlane32_swap_b32 v13, v14")
    a.e("v_max_f32 v13, v13, v14")
    for i in range(16):
        a.e(f"v_sub_f32 v{S+i}, v{S+i}, v13")
    for i in range(16):
        a.e(f"v_sub_f32 v{vNEGM+i}, 0, v13")
    for e in range(6):
        E(a, 0, e)
        if e >= 1: Ad(a, 0, e - 1)
        else: a.e("s_nop 0")
        if e >= 2 and e % 2 == 0: Cv(a, 0, (e - 2) // 2)
    a.stamp(3)
    a.e("s_waitcnt lgkmcnt(0)")
    ex0 = {2: [f"v_lshl_add_u32 v{vKA[3]}, s{sKB}, 14, v{vKC[3]}"]}
    ex1 = {2: [f"s_add_u32 s{sLOOP}, s{sLOOP}, 1"],
           6: [f"v_lshl_add_u32 v{vVA[0]}, s{sKB}, 14, v{vVC[0]}"],
           8: [f"v_lshl_add_u32 v{vVA[1]}, s{sKB}, 14, v{vVC[1]}", f"s_add_u32 s{sKB}, s{sKB}, 1"],
           9: [f"s_and_b32 s{sKB}, s{sKB}, 3"],
           10: [f"v_lshl_add_u32 v{vKA[0]}, s{sKB}, 14, v{vKC[0]}"],
           11: [f"v_lshl_add_u32 v{vKA[1]}, s{sKB}, 14, v{vKC[1]}"],
           14: [f"v_lshl_add_u32 v{vKA[2]}, s{sKB}, 14, v{vKC[2]}", f"s_cmp_eq_u32 s{sLOOP}, 0"]}
    dry = A(); lg = LG(); lg.inloop = True
    for s_ in range(8): lg.issue(("K", s_))
    for n in range(7): lg.issue(("V", 0, n))
    lg.done = lg.n
    slot(dry, lg, 0); slot(dry, lg, 1)
    st0 = (lg.n - lg.done)
    SK = int(OPT.get("skew", "0"))
    ncopy = 4 if SK else 1
    import copy
    if ncopy > 1:
        for w in range(1, 4):
            a.e(f"s_cmp_eq_u32 s{sWAVE}, {w}")
            a.e(f"s_cbranch_scc1 L_main_loop{w}")
    lg0 = lg
    for w in range(ncopy):
        lg = copy.deepcopy(lg0)
        sk = [f"s_nop {w*SK//4 - 1}"] if w * SK >= 4 else []
        e0 = dict(ex0); e1 = dict(ex1); e2 = {}
        e0[0] = sk; e1[0] = sk; e2[0] = sk
        a.l.append(".p2align 6")
        a.lab(f"L_main_loop{w}")
        slot(a, lg, 0, extra=e0)
        slot(a, lg, 1, extra=e1)
        assert (lg.n - lg.done) == st0, (lg.n - lg.done, st0)
        a.e(f"s_cbranch_scc0 L_main_loop{w}")
        slot(a, lg, 0, kr=False, extra=e2)
        if w < ncopy - 1 or True:
            pass
        if ncopy > 1 and w < ncopy - 1:
            a.e("s_branch L_main_last")
    a.lab("L_main_last")
    if "oldtail" in FLAGS:
        slot(a, lg, 1, qk=False, kr=False, vnext=False, bar=False, smn=False)
        a.stamp(4); a.stamp(5)
        a.e(f"v_and_b32 v14, 16, v{vLANE}")
        a.e("v_cmp_eq_u32 vcc, 0, v14")
        a.e("s_nop 4")
        a.e(f"v_cndmask_b32 v13, v{vLA+1}, v{vLA}, vcc")
        a.e(f"v_cmp_nlt_f32 vcc, v13, s{sTHR}")
        a.e("v_rcp_f32 v15, v13")
        a.e(f"s_lshl_b32 s{sROW0}, s{sWAVE}, 5")
        a.e(f"s_lshl_b32 s{sPRIV}, s{sWAVE}, 13")
        a.e("s_mov_b64 s[56:57], -1")
        a.e("s_cbranch_vccnz L_slow")
        a.e("s_nop 3")
        store_out(a, stb)
    else:
        cur = 1
        va = "valuadd" in FLAGS
        for n in range(7, 16):
            vread(a, lg, cur, n, cur * 8192)
        a.e(f"v_and_b32 v14, 16, v{vLANE}")
        a.e("v_cmp_eq_u32 s[60:61], 0, v14" if not DBG else "v_cmp_eq_u32 s[76:77], 0, v14")
        msk = "s[60:61]" if not DBG else "s[76:77]"
        E(a, cur, 6); Ad(a, cur, 5); E(a, cur, 7); Cv(a, cur, 2); Ad(a, cur, 6)
        E(a, cur, 8); Cv(a, cur, 3); Ad(a, cur, 7)
        order0 = [(0, t) for t in range(4)]
        ee = 9
        a.e("s_nop 1")
        if not va: mfma16(a, vLA, vONES, vP[cur], vLA)
        for (ks, t) in order0:
            f = ks * 4 + t
            lg.need(a, [("V", cur, 2 * f + 1)])
            mfma32(a, vO + 16 * t, vV + 4 * f, vP[cur] + 4 * ks, vO + 16 * t)
            for _ in range(2):
                if ee <= 15:
                    E(a, cur, ee)
                    Ad(a, cur, ee - 1)
                    if ee % 2 == 0: Cv(a, cur, (ee - 2) // 2)
                    ee += 1
        a.e("s_nop 0")
        Cv(a, cur, 7)
        Ad(a, cur, 15)
        a.e(f"s_lshl_b32 s{sROW0}, s{sWAVE}, 5")
        a.e(f"s_lshl_b32 s{sPRIV}, s{sWAVE}, 13")
        if not va: mfma16(a, vLA, vONES, vP[cur] + 4, vLA)
        for t in range(4):
            f = 4 + t
            lg.need(a, [("V", cur, 2 * f + 1)])
            mfma32(a, vO + 16 * t, vV + 4 * f, vP[cur] + 4, vO + 16 * t)
            if t == 1:
                a.e("s_mov_b64 s[56:57], -1")
                if va:
                    a.e(f"v_add_f32 v13, v{vL[0]}, v{vL[1]}")
                    a.e("v_mov_b32 v14, v13")
                    a.e("s_nop 1")
                    a.e("v_permlane32_swap_b32 v13, v14")
                    a.e("v_add_f32 v13, v13, v14")
                else:
                    a.e("s_nop 3")
                    a.e(f"v_cndmask_b32 v13, v{vLA+1}, v{vLA}, {msk}")
                a.e(f"v_cmp_nlt_f32 vcc, v13, s{sTHR}")
                a.e("v_rcp_f32 v15, v13")
        a.stamp(4); a.stamp(5)
        a.e("s_cbranch_vccnz L_slow")
        if "ldsout" in FLAGS:
            store_out_lds(a, stb)
        else:
            a.e("s_nop 4")
            store_out(a, stb)
    a.dump()
    a.e("s_endpgm")

    if "near" not in FLAGS:
        helper_head()
    else:
        a.lab("L_helper2")
    if "hp0" in FLAGS: a.e("s_setprio 0")
    a.e(f"v_and_b32 v2, 15, v{vLANE}")
    a.e(f"v_lshrrev_b32 v3, 4, v{vLANE}")
    a.e("v_lshrrev_b32 v13, 1, v2")
    a.e("v_xor_b32 v13, v13, v3")
    a.e("v_lshlrev_b32 v13, 4, v13")
    a.e(f"v_lshl_add_u32 v{hKC[0]}, v2, 7, v13")
    a.e(f"v_xor_b32 v{hKC[1]}, 64, v{hKC[0]}")
    a.e(f"v_bfe_u32 v13, v{vLANE}, 2, 2")
    a.e("v_lshl_add_u32 v14, v3, 2, v13")
    a.e("v_lshlrev_b32 v14, 7, v14")
    a.e("v_lshrrev_b32 v13, 1, v13")
    a.e("v_lshl_add_u32 v14, v13, 6, v14")
    a.e(f"v_and_b32 v13, 3, v{vLANE}")
    a.e("v_lshl_add_u32 v14, v13, 3, v14")
    a.e("v_and_b32 v13, 1, v3")
    a.e("v_lshl_add_u32 v14, v13, 5, v14")
    a.e(f"v_add_u32 v{hVC[0]}, {VRING:#x}, v14")
    a.e(f"v_mov_b32 v{hL}, 0")
    for i in range(32):
        a.e(f"v_mov_b32 v{hO+i}, 0")
    a.e(f"v_mov_b32 v13, {CNT:#x}")
    a.e("v_mov_b32 v14, 0")
    a.e("ds_write_b32 v13, v14")
    a.e(f"s_lshl_b32 s{sBS}, s{sH}, 13")
    a.stamp(2)

    def h_kreads(addr, off=0, us=(0, 1), dst=hK):
        for u in us:
            for s in range(4):
                a.e(f"ds_read_b128 {vr(dst+(u*4+s)*4,4)}, v{addr[s&1]} offset:{off+(s>>1)*4096+u*2048}")

    a.pstamp(3)
    a.e(f"v_add_u32 v{hKA[0]}, s{sQ9}, v{hKC[0]}")
    a.e(f"v_add_u32 v{hKA[1]}, s{sQ9}, v{hKC[1]}")
    a.e(f"s_cmp_eq_u32 s{sOFF}, 1")
    a.e("s_cbranch_scc1 L_h_q9k")
    a.e("s_waitcnt vmcnt(4)")
    a.lab("L_h_q9k")
    a.e("s_waitcnt vmcnt(8)")
    h_kreads(hKA, us=(0,), dst=hQ)
    a.e("s_waitcnt lgkmcnt(0)")
    a.e("s_setprio 0")
    scale_q(a, hQ, 16, [13, 14, 15, 242])
    a.e("s_setprio 2")
    a.e("s_waitcnt vmcnt(4) lgkmcnt(0)")
    a.pstamp(4)
    a.e("s_barrier")
    issue(); issue()
    a.pstamp(5)
    h_kreads(hKC)
    a.e("s_waitcnt vmcnt(8) lgkmcnt(0)")
    a.e("s_barrier")
    issue(); issue(0 if "split" in FLAGS else None)
    for u in range(2):
        for s in range(4):
            mfma16(a, hS[u], hK + (u * 4 + s) * 4, hQ + 4 * s, "0" if s == 0 else hS[u])
    a.e("s_nop 7")
    a.e("s_nop 1")
    a.e(f"v_max3_f32 v13, v{hS[0]}, v{hS[0]+1}, v{hS[0]+2}")
    a.e(f"v_max3_f32 v13, v13, v{hS[0]+3}, v{hS[1]}")
    a.e(f"v_max3_f32 v13, v13, v{hS[1]+1}, v{hS[1]+2}")
    a.e(f"v_max_f32 v13, v13, v{hS[1]+3}")
    a.e("v_mov_b32 v14, v13")
    a.e("s_nop 1")
    a.e("v_permlane32_swap_b32 v13, v14")
    a.e("v_max_f32 v13, v13, v14")
    a.e("v_mov_b32 v14, v13")
    a.e("s_nop 1")
    a.e("v_permlane16_swap_b32 v13, v14")
    a.e("v_max_f32 v13, v13, v14")
    for i in range(4):
        a.e(f"v_sub_f32 v{hNEGM+i}, 0, v13")
    a.stamp(3)
    a.e(f"s_mov_b32 s{sN}, 31")
    cnt = [0]
    ool = []
    split = "split" in FLAGS
    def sync():
        cnt[0] += 1
        tag = cnt[0]
        if split: issue(1)
        a.e(f"s_sub_u32 s{sN}, s{sN}, 1")
        a.e(f"s_cmp_ge_u32 s{sN}, 29")
        a.e(f"s_cbranch_scc1 L_sk_{tag}")
        a.e("s_waitcnt vmcnt(20) lgkmcnt(0)")
        if "nobar" not in FLAGS: a.e("s_barrier")
        a.lab(f"L_si_{tag}")
        if "nodma" not in FLAGS: issue(0 if split else None)
        a.lab(f"L_sd_{tag}")
        ool.append(tag)
    a.e(f"s_mov_b32 s{sK}, s{sH}")
    a.lab("L_h_pre")
    a.e(f"s_sub_u32 s{sK}, s{sK}, 1")
    a.e("s_cbranch_scc1 L_h_go")
    sync()
    a.e("s_branch L_h_pre")
    a.lab("L_h_go")
    a.e(f"s_mov_b32 s{sK}, {(-7) & 0xffffffff:#x}")
    def h_sm(u):
        S_ = hS[u]
        for i in range(4):
            a.e(f"v_exp_f32 v{S_+i}, v{S_+i}")
        a.e("s_nop 0")
        for i in range(4):
            a.e(f"v_add_f32 v{hL}, v{hL}, v{S_+i}")
        a.e(f"v_cvt_pk_bf16_f32 v{hP+2*u}, v{S_}, v{S_+1}")
        a.e(f"v_cvt_pk_bf16_f32 v{hP+2*u+1}, v{S_+2}, v{S_+3}")
    a.l.append(".p2align 6")
    a.lab("L_h_loop")
    nh = "nohelp" in FLAGS
    dpst = {"on": "nodp" not in FLAGS}
    def hi():
        if dpst["on"]: a.e("s_setprio 2")
    def lo():
        if dpst["on"]: a.e("s_setprio 0")
    def phases():
        if not nh:
            lo()
            for e in range(2):
                a.e(f"v_add_u32 v{hKA[e]}, s{sBS}, v{hKC[e]}")
            a.e(f"v_add_u32 v{hVA[0]}, s{sBS}, v{hVC[0]}")
            for e in range(1, 4):
                a.e(f"v_xor_b32 v{hVA[e]}, {32*e}, v{hVA[0]}")
            a.e(f"s_add_u32 s{sBS}, s{sBS}, 0x8000")
            a.e(f"s_and_b32 s{sBS}, s{sBS}, 0xffff")
            h_kreads(hKA)
            a.e("s_waitcnt lgkmcnt(4)")
            hi()
            for s in range(4):
                mfma16(a, hS[0], hK + s * 4, hQ + 4 * s, hNEGM if s == 0 else hS[0])
            lo()
            for t16 in range(4):
                for u in range(2):
                    a.e(f"ds_read_b64_tr_b16 {vr(hV+4*t16+2*u,2)}, v{hVA[t16&3]} offset:{(t16>>2)*4096+u*2048}")
            hi()
        sync()
        if not nh:
            for s in range(4):
                mfma16(a, hS[1], hK + (4 + s) * 4, hQ + 4 * s, hNEGM if s == 0 else hS[1])
            lo()
            for t16 in range(4, 8):
                for u in range(2):
                    a.e(f"ds_read_b64_tr_b16 {vr(hV+4*t16+2*u,2)}, v{hVA[t16&3]} offset:{(t16>>2)*4096+u*2048}")
            h_sm(0)
            hi()
        sync()
        if not nh:
            lo()
            h_sm(1)
            hi()
            a.e("s_nop 1")
            for t16 in range(4):
                mfma16(a, hO + 4 * t16, hV + 4 * t16, hP, hO + 4 * t16)
        sync()
        if not nh:
            for t16 in range(4, 8):
                mfma16(a, hO + 4 * t16, hV + 4 * t16, hP, hO + 4 * t16)
        sync()
    phases()
    a.e(f"s_add_u32 s{sK}, s{sK}, 1")
    a.e("s_cbranch_scc0 L_h_loop")
    dpst["on"] = "tailhi" not in FLAGS
    phases()
    a.e("s_branch L_h_fin")
    for tag in ool:
        a.lab(f"L_sk_{tag}")
        a.e(f"s_cmp_gt_u32 s{sN}, 30")
        a.e(f"s_cbranch_scc1 L_st_{tag}")
        a.e(f"s_cmp_eq_u32 s{sN}, 29")
        a.e(f"s_cbranch_scc1 L_sr_{tag}")
        a.e("s_waitcnt vmcnt(12)")
        a.lab(f"L_sr_{tag}")
        a.e("s_waitcnt vmcnt(16) lgkmcnt(0)")
        if "nobar" not in FLAGS: a.e("s_barrier")
        issue()
        a.e(f"s_branch L_si_{tag}")
        a.lab(f"L_st_{tag}")
        a.e(f"s_mov_b32 s{sN}, 0")
        a.e("s_waitcnt lgkmcnt(0)")
        a.e("s_nop 7")
        a.e(f"s_branch L_sd_{tag}")
    a.lab("L_h_fin")
    a.stamp(4)
    a.e(f"v_mov_b32 v14, v{hL}")
    a.e("s_nop 1")
    a.e(f"v_permlane32_swap_b32 v{hL}, v14")
    a.e(f"v_add_f32 v{hL}, v{hL}, v14")
    a.e(f"v_mov_b32 v14, v{hL}")
    a.e("s_nop 1")
    a.e(f"v_permlane16_swap_b32 v{hL}, v14")
    a.e(f"v_add_f32 v{hL}, v{hL}, v14")
    a.e(f"s_lshl_b32 s{sT0}, s{sH}, 13")
    a.e(f"s_add_u32 s{sT0}, s{sT0}, {CAREA:#x}")
    a.e(f"v_lshlrev_b32 v13, 4, v{vLANE}")
    a.e(f"v_add_u32 v14, s{sT0}, v13")
    a.e("s_nop 4")
    for t16 in range(8):
        a.e(f"ds_write_b128 v14, {vr(hO+4*t16,4)} offset:{t16*1024}")
    a.e(f"s_lshl_b32 s{sT0}, s{sH}, 8")
    a.e(f"s_add_u32 s{sT0}, s{sT0}, {LAREA:#x}")
    a.e(f"v_lshlrev_b32 v15, 2, v{vLANE}")
    a.e(f"v_add_u32 v14, s{sT0}, v15")
    a.e(f"ds_write_b32 v14, v{hL}")
    a.e("s_waitcnt lgkmcnt(0)")
    a.e(f"v_mov_b32 v14, {CNT:#x}")
    a.e("v_mov_b32 v12, 1")
    a.e("s_mov_b64 exec, 1")
    a.e("ds_add_u32 v14, v12")
    a.e("s_mov_b64 exec, -1")
    a.e("s_setprio 0")
    a.lab("L_h_spin")
    a.e("s_sleep 1")
    a.e("ds_read_b32 v12, v14")
    a.e("s_waitcnt lgkmcnt(0)")
    a.e(f"v_readfirstlane_b32 s{sT0}, v12")
    a.e("s_nop 3")
    a.e(f"s_cmp_lt_u32 s{sT0}, 4")
    a.e("s_cbranch_scc1 L_h_spin")
    a.e("s_setprio 2")
    a.stamp(5)
    a.e(f"s_lshl_b32 s{sT0}, s{sH}, 11")
    a.e(f"s_add_u32 s{sT0}, s{sT0}, {CAREA:#x}")
    a.e(f"v_add_u32 v14, s{sT0}, v13")
    for x in range(4):
        for k in range(2):
            a.e(f"ds_read_b128 {vr(hX+(x*2+k)*4,4)}, v14 offset:{x*8192+k*1024}")
    a.e(f"v_add_u32 v14, {LAREA:#x}, v15")
    for x in range(4):
        a.e(f"ds_read_b32 v{hK+x}, v14 offset:{x*256}")
    a.e("s_waitcnt lgkmcnt(0)")
    a.e(f"v_add_f32 v13, v{hK}, v{hK+1}")
    a.e(f"v_add_f32 v14, v{hK+2}, v{hK+3}")
    a.e("v_add_f32 v13, v13, v14")
    a.e(f"v_cmp_nlt_f32 vcc, v13, s{sTHR}")
    a.e("v_rcp_f32 v15, v13")
    a.e("s_nop 3")
    a.e("s_cbranch_vccnz L_h_bad")
    for k in range(2):
        for i in range(4):
            r0 = hX + k * 4 + i
            a.e(f"v_add_f32 v{r0}, v{r0}, v{r0+8}")
            a.e(f"v_add_f32 v{r0+16}, v{r0+16}, v{r0+24}")
            a.e(f"v_add_f32 v{r0}, v{r0}, v{r0+16}")
            a.e(f"v_mul_f32 v{r0}, v{r0}, v15")
    for k in range(2):
        r0 = hX + k * 4
        a.e(f"v_cvt_pk_bf16_f32 v{hK+8+2*k}, v{r0}, v{r0+1}")
        a.e(f"v_cvt_pk_bf16_f32 v{hK+8+2*k+1}, v{r0+2}, v{r0+3}")
    a.e(f"v_lshlrev_b32 v14, 8, v2")
    a.e(f"v_lshl_add_u32 v14, v3, 3, v14")
    a.e(f"s_lshl_b32 s{sT0}, s{sH}, 6")
    a.e(f"s_add_u32 s{sT0}, s{sT0}, 0x8000")
    a.e(f"v_add_u32 v14, s{sT0}, v14")
    for k in range(2):
        a.e(f"buffer_store_dwordx2 {vr(hK+8+2*k,2)}, v14, s[{sOSRD}:{sOSRD+3}], s{sQOFF} offen offset:{32*k}{stb}")
    a.dump()
    a.lab("L_end")
    a.e("s_endpgm")
    a.lab("L_h_bad")
    a.e(f"s_cmp_lg_u32 s{sH}, 0")
    a.e("s_cbranch_scc1 L_end")
    a.e(f"s_mov_b32 s{sROW0}, 128")
    a.e(f"s_mov_b32 s{sPRIV}, {4*8192}")
    a.e("s_mov_b32 s56, 0x0000ffff")
    a.e("s_mov_b32 s57, 0x0000ffff")
    a.lab("L_slow")
    a.e("s_waitcnt vmcnt(0) lgkmcnt(0)")
    a.e("s_nop 7")
    a.e("s_nop 7")
    a.e(f"v_and_b32 v2, 31, v{vLANE}")
    a.e(f"v_lshrrev_b32 v3, 5, v{vLANE}")
    a.e(f"v_lshlrev_b32 v4, 8, v2")
    a.e(f"v_lshl_add_u32 v4, v3, 4, v4")
    a.e(f"s_lshl_b32 s{sT0}, s{sROW0}, 8")
    a.e(f"v_add_u32 v{vQO}, s{sT0}, v4")
    for s in range(8):
        a.e(f"buffer_load_dwordx4 {vr(vQ+4*s,4)}, v{vQO}, s[{sQSRD}:{sQSRD+3}], s{sQOFF} offen offset:{32*s}")
    a.e(f"v_bfe_u32 v13, v{vLANE}, 4, 1")
    a.e("v_lshlrev_b32 v13, 2, v13")
    a.e("v_lshl_add_u32 v13, v3, 1, v13")
    a.e(f"v_and_b32 v14, 7, v{vLANE}")
    a.e("v_xor_b32 v13, v13, v14")
    a.e("v_lshlrev_b32 v13, 4, v13")
    a.e(f"v_lshrrev_b32 v14, 3, v{vLANE}")
    a.e("v_lshl_add_u32 v5, v14, 8, v13")
    a.e(f"v_bfe_u32 v13, v{vLANE}, 2, 2")
    a.e("v_lshl_add_u32 v14, v3, 2, v13")
    a.e("v_lshlrev_b32 v14, 7, v14")
    a.e("v_lshrrev_b32 v13, 1, v13")
    a.e("v_lshl_add_u32 v14, v13, 6, v14")
    a.e(f"v_bfe_u32 v13, v{vLANE}, 4, 1")
    a.e("v_xor_b32 v13, v13, v3")
    a.e("v_lshl_add_u32 v14, v13, 5, v14")
    a.e(f"v_and_b32 v13, 3, v{vLANE}")
    a.e("v_lshl_add_u32 v14, v13, 3, v14")
    a.e(f"v_add_u32 v{vVA[0]}, s{sPRIV}, v14")
    a.e(f"v_xor_b32 v{vVA[1]}, 64, v{vVA[0]}")
    a.e("s_waitcnt vmcnt(0)")
    scale_q(a, vQ, 32, [13, 14, 15, 2])
    a.e("v_mov_b32 v6, 0xff800000")
    a.e(f"s_mov_b32 s{sT1}, s{sKVOFF}")
    a.e(f"s_mov_b32 s{sN}, 0")
    def sl_qk(c0):
        for s in range(8):
            a.e(f"buffer_load_dwordx4 {vr(vK+4*s,4)}, v4, s[{sKSRD}:{sKSRD+3}], s{sT1} offen offset:{32*s}")
        a.e("s_waitcnt vmcnt(0)")
        for s in range(8):
            mfma32(a, vS[0], vK + 4 * s, vQ + 4 * s, c0 if s == 0 else vS[0])
        a.e("s_nop 7")
        a.e("s_nop 7")
    a.lab("L_slow_p1")
    sl_qk("0")
    for i in range(0, 16, 2):
        a.e(f"v_max3_f32 v6, v6, v{vS[0]+i}, v{vS[0]+i+1}")
    a.e(f"s_add_u32 s{sT1}, s{sT1}, 0x2000")
    a.e(f"s_add_u32 s{sN}, s{sN}, 1")
    a.e(f"s_cmp_lt_u32 s{sN}, 32")
    a.e("s_cbranch_scc1 L_slow_p1")
    a.e("v_mov_b32 v14, v6")
    a.e("s_nop 1")
    a.e("v_permlane32_swap_b32 v6, v14")
    a.e("v_max_f32 v6, v6, v14")
    for i in range(16):
        a.e(f"v_sub_f32 v{vNEGM+i}, 0, v6")
    for i in range(64):
        a.e(f"v_mov_b32 v{vO+i}, 0")
    a.e(f"v_mov_b32 v{vL[0]}, 0")
    a.e(f"s_mov_b32 s{sT1}, s{sKVOFF}")
    a.e(f"s_mov_b32 s{sN}, 0")
    a.lab("L_slow_p2")
    for p in range(8):
        hf = p >> 2; rg = p & 3
        a.e(f"s_add_u32 m0, s{sPRIV}, {hf*4096 + rg*1024}")
        a.e(f"s_add_u32 s{sT2}, s{sT1}, {rg*2048 + hf*128}")
        a.e(f"buffer_load_dwordx4 v5, s[{sVSRD}:{sVSRD+3}], s{sT2} offen lds")
    sl_qk(vNEGM)
    lg2 = LG()
    for n in range(16):
        vread(a, lg2, 0, n, 0)
        if n == 7: a.e("s_waitcnt lgkmcnt(0)")
    for e in range(16):
        a.e(f"v_exp_f32 v{vS[0]+e}, v{vS[0]+e}")
    a.e("s_nop 0")
    for e in range(16):
        a.e(f"v_add_f32 v{vL[0]}, v{vL[0]}, v{vS[0]+e}")
    for k in range(8):
        Cv(a, 0, k)
    a.e("s_waitcnt lgkmcnt(0)")
    a.e("s_nop 1")
    for ks in range(2):
        for t in range(4):
            mfma32(a, vO + 16 * t, vV + 4 * (ks * 4 + t), vP[0] + 4 * ks, vO + 16 * t)
    a.e(f"s_add_u32 s{sT1}, s{sT1}, 0x2000")
    a.e(f"s_add_u32 s{sN}, s{sN}, 1")
    a.e(f"s_cmp_lt_u32 s{sN}, 32")
    a.e("s_cbranch_scc1 L_slow_p2")
    a.e(f"v_mov_b32 v14, v{vL[0]}")
    a.e("s_nop 1")
    a.e(f"v_permlane32_swap_b32 v{vL[0]}, v14")
    a.e(f"v_add_f32 v13, v{vL[0]}, v14")
    a.e("v_rcp_f32 v15, v13")
    a.e("s_nop 7")
    a.e("s_nop 7")
    for t in range(4):
        for k in range(2):
            o = vO + 16 * t + 8 * k
            x = vX + 4 * (2 * t + k)
            for i in range(8):
                a.e(f"v_mul_f32 v{o+i}, v{o+i}, v15")
            for i in range(4):
                a.e(f"v_cvt_pk_bf16_f32 v{x+i}, v{o+2*i}, v{o+2*i+1}")
            a.e("s_nop 1")
            a.e(f"v_permlane32_swap_b32 v{x}, v{x+2}")
            a.e(f"v_permlane32_swap_b32 v{x+1}, v{x+3}")
    a.e("s_mov_b64 exec, s[56:57]")
    for t in range(4):
        for k in range(2):
            x = vX + 4 * (2 * t + k)
            a.e(f"buffer_store_dwordx4 {vr(x,4)}, v{vQO}, s[{sOSRD}:{sOSRD+3}], s{sQOFF} offen offset:{64*t+32*k}")
    a.e("s_endpgm")
    a.l.append('.section .rodata,"a"')
    a.l.append(".p2align 6")
    a.l.append(f".amdhsa_kernel {NAME}_kernel")
    a.l.append("  .amdhsa_next_free_vgpr 256")
    a.l.append("  .amdhsa_next_free_sgpr 80")
    a.l.append("  .amdhsa_accum_offset 256")
    a.l.append("  .amdhsa_group_segment_fixed_size 0")
    a.l.append("  .amdhsa_kernarg_size 48")
    a.l.append("  .amdhsa_user_sgpr_count 2")
    a.l.append("  .amdhsa_user_sgpr_kernarg_segment_ptr 1")
    a.l.append("  .amdhsa_system_sgpr_workgroup_id_x 1")
    a.l.append(".end_amdhsa_kernel")
    return a.text()

if __name__ == "__main__":
    out = sys.argv[1] if len(sys.argv) > 1 else OUT
    for x in sys.argv[2:]:
        if x == "dbg": DBG = True
        elif "=" in x:
            k, v = x.split("="); OPT[k] = v.replace("+", " ").replace("none", "")
        else: FLAGS.add(x)
    open(out, "w").write(gen())
    print("wrote", out)
```
